```python
import torch

def _softmax(x, axis=-1):
    return torch.softmax(x, dim=axis)
def _gelu(x):
    return torch.nn.functional.gelu(x, approximate="tanh")
def _silu(x):
    return torch.nn.functional.silu(x)
def _sigmoid(x):
    return torch.sigmoid(x)
def _layernorm(x, axis=-1, eps=1e-5):
    m = x.mean(dim=axis, keepdim=True)
    v = x.var(dim=axis, keepdim=True, unbiased=False)
    return (x - m) / torch.sqrt(v + eps)
def _scatter_add(tgt, idx, src, axis=0):
    return tgt.clone().index_add_(axis, idx, src)
def _segment_sum(src, seg, n):
    out = torch.zeros((n,) + src.shape[1:], dtype=src.dtype)
    return out.index_add_(0, seg, src)
def _pad(x, pw):
    flat = tuple(v for pair in reversed(pw) for v in pair)
    return torch.nn.functional.pad(x, flat)

kernel_name = 'standalone__gqa_softmax__near_ridge'

def setup_inputs():

    _w = (lambda a: (lambda t: t.to(torch.bfloat16) if t.is_floating_point() else t)(torch.as_tensor(a)))
    B, Hq, Hkv, Sq, Sk, D = 8, 32, 8, 384, 512, 128
    return {
        "q": _w((lambda *s: torch.randn(*s, dtype=torch.bfloat16) * 0.8)(B, Hq, Sq, D)),
        "k": _w((lambda *s: torch.randn(*s, dtype=torch.bfloat16) * 0.8)(B, Hkv, Sk, D)),
        "v": _w((lambda *s: torch.randn(*s, dtype=torch.bfloat16) * 0.05)(B, Hkv, Sk, D)),
    }

def reference(q, k, v):
    B, Hq, Sq, D = q.shape
    Hkv = k.shape[1]
    rep = Hq // Hkv
    k = (lambda x, n, axis: torch.repeat_interleave(x, n, dim=axis))(k, rep, axis=1)
    v = (lambda x, n, axis: torch.repeat_interleave(x, n, dim=axis))(v, rep, axis=1)
    scale = D ** -0.5
    scores = torch.einsum("bhqd,bhkd->bhqk", q, k) * scale
    p = _softmax(scores, axis=-1)
    return torch.einsum("bhqk,bhkd->bhqd", p, v)
```

```python
def V(n): return n
def A(n): return 256 + n
def S(n): return 1000 + n
M0 = 2000
VCC = 2001
def vr(n, c=1): return [V(n + i) for i in range(c)]
def ar(n, c=1): return [A(n + i) for i in range(c)]
def rname(r, c=1):
    if r < 256: p, n = 'v', r
    elif r < 512: p, n = 'a', r - 256
    else: p, n = 's', r - 1000
    return f"{p}{n}" if c == 1 else f"{p}[{n}:{n+c-1}]"
def rng(r, c): return list(range(r, r + c))

VALU_KINDS = ('valu', 'trans', 'perm', 'rfl')
class Ins:
    def __init__(s, text, kind, rd=(), wr=(), cost=None, **meta):
        s.text, s.kind, s.rd, s.wr = text, kind, set(rd), set(wr)
        s.cost = cost if cost is not None else (8 if kind in ('trans', 'mfma') else 4)
        s.meta = meta
        s.ws = 1
        s.earliest = meta.get('earliest', -1)
        s.deadline = meta.get('deadline', 1 << 30)
        s.done = False
    def __repr__(s): return s.text

def mfma(d, a, b, c):
    ct = '0' if c is None else rname(c, 16)
    i = Ins(f"v_mfma_f32_32x32x16_bf16 {rname(d,16)}, {rname(a,4)}, {rname(b,4)}, {ct}", 'mfma',
            rd=rng(a, 4) + rng(b, 4) + ([] if c is None else rng(c, 16)), wr=rng(d, 16))
    i.ab = set(rng(a, 4) + rng(b, 4)); i.c = c; i.d = d
    return i

class Emitter:
    def __init__(s):
        s.out = []
        s.pos = []
        s.cur = 0
        s.lgkm = []
        s.vm = []
        s.nnop = 0
        s.window = 24
    def need(s, ins):
        n = 0
        k = len(s.out) - 1
        while k >= 0 and s.cur - s.pos[k] <= s.window:
            p = s.out[k]; gap = s.cur - s.pos[k] - p.ws
            req = 0
            pk, ck = p.kind, ins.kind
            if pk in VALU_KINDS:
                w = p.wr
                if ck == 'mfma' and (w & ins.rd): req = max(req, 2)
                if pk == 'trans' and ck != 'trans' and (w & ins.rd): req = max(req, 1)
                if ck == 'perm' and (w & ins.rd): req = max(req, 2)
                if ck == 'rfl' and (w & ins.rd): req = max(req, 1)
                sw = {r for r in w if r >= 1000}
                if sw & ins.rd:
                    if ck in VALU_KINDS: req = max(req, 2)
                    elif ck == 'salu': req = max(req, 4)
                    else: req = max(req, 5)
            if pk == 'mfma':
                w = p.wr
                if ck == 'mfma':
                    if w & ins.ab: req = max(req, 12)
                    if ins.c is not None and (w & set(rng(ins.c, 16))) and ins.c != p.d: req = max(req, 10)
                    if ins.c != p.d and (w & ins.wr): req = max(req, 12)
                elif w & (ins.rd | ins.wr): req = max(req, 12)
                if p.c is not None and ck != 'mfma' and (set(rng(p.c, 16)) & ins.wr): req = max(req, 7)
            if pk == 'salu' and M0 in p.wr and M0 in ins.rd and ck != 'salu': req = max(req, 1)
            if pk in ('vm_st', 'ds_w') and (p.meta.get('data', set()) & ins.wr): req = max(req, 2)
            n = max(n, req - gap)
            k -= 1
        return n
    def waits_needed(s, ins):
        res = []
        touch = ins.rd | ins.wr
        for q in (s.lgkm, s.vm):
            idx = -1
            for j, p in enumerate(q):
                if p.wr & touch: idx = j
            res.append(None if idx < 0 else len(q) - 1 - idx)
        return res
    def raw(s, ins):
        s.out.append(ins); s.pos.append(s.cur); s.cur += ins.ws; ins.done = True
        if ins.kind in ('ds_r', 'ds_w'): s.lgkm.append(ins)
        if ins.kind in ('vm_ld', 'vm_dma', 'vm_st'): s.vm.append(ins)
    def nop(s, n):
        while n > 0:
            k = min(n, 8)
            i = Ins(f"s_nop {k-1}", 'nop', cost=4 * k); i.ws = k
            s.raw(i); n -= k; s.nnop += k
    def waitcnt(s, lg=None, vm=None):
        if lg is not None and lg >= len(s.lgkm): lg = None
        if vm is not None and vm >= len(s.vm): vm = None
        if lg is None and vm is None: return 0
        parts = []
        if vm is not None:
            vm = min(vm, 63)
            parts.append(f"vmcnt({vm})"); s.vm = s.vm[len(s.vm) - vm:] if vm else []
        if lg is not None:
            lg = min(lg, 15)
            parts.append(f"lgkmcnt({lg})"); s.lgkm = s.lgkm[len(s.lgkm) - lg:] if lg else []
        s.raw(Ins("s_waitcnt " + " ".join(parts), 'wait'))
        return 4
    def count_after(s, ops):
        lg = vm = None
        for op in ops:
            if op in s.lgkm:
                n = len(s.lgkm) - 1 - s.lgkm.index(op); lg = n if lg is None else min(lg, n)
            if op in s.vm:
                n = len(s.vm) - 1 - s.vm.index(op); vm = n if vm is None else min(vm, n)
        return lg, vm
    def wait_for(s, ops):
        for op in ops: assert op.done, op
        lg, vm = s.count_after(ops)
        return s.waitcnt(lg, vm)
    def ready(s, ins):
        if s.need(ins) > 0: return False
        lg, vm = s.waits_needed(ins)
        return (lg is None and vm is None) or ins.meta.get('may_wait', False)
    def emit(s, ins):
        c = 0
        lg, vm = s.waits_needed(ins)
        if lg is not None and lg > 15: lg = 15 if False else lg
        c += s.waitcnt(lg, vm)
        n = s.need(ins)
        if n > 0: s.nop(n); c += 4 * n
        s.raw(ins)
        return c + ins.cost
    def label(s, name):
        i = Ins(f"{name}:", 'label', cost=0); i.ws = 0; s.raw(i)
    def text(s):
        return "\n".join(("" if i.kind == 'label' else "    ") + i.text for i in s.out) + "\n"

def op(text, kind, rd=(), wr=(), **m): return Ins(text, kind, rd, wr, **m)
def salu(text, rd=(), wr=(), **m): return Ins(text, 'salu', rd, wr, **m)
def valu(name, d, *src, kind='valu', **m):
    t = f"{name} {rname(d)}, " + ", ".join(x if isinstance(x, str) else rname(x) for x in src)
    return Ins(t, kind, rd=[x for x in src if not isinstance(x, str)], wr=[d], **m)
def ds_read128(d, addr, off, **m): return Ins(f"ds_read_b128 {rname(d,4)}, {rname(addr)} offset:{off}", 'ds_r', rd=[addr], wr=rng(d, 4), **m)
def ds_readtr(d, addr, off, **m): return Ins(f"ds_read_b64_tr_b16 {rname(d,2)}, {rname(addr)} offset:{off}", 'ds_r', rd=[addr], wr=rng(d, 2), **m)
def ds_write128(addr, d, off, **m): return Ins(f"ds_write_b128 {rname(addr)}, {rname(d,4)} offset:{off}", 'ds_w', rd=[addr] + rng(d, 4), data=set(rng(d, 4)), **m)
def ds_write64(addr, d, off, **m): return Ins(f"ds_write_b64 {rname(addr)}, {rname(d,2)} offset:{off}", 'ds_w', rd=[addr] + rng(d, 2), data=set(rng(d, 2)), **m)
def bload(d, voff, srd, soff, off, flags="", **m):
    so = '0' if soff is None else rname(soff)
    return Ins(f"buffer_load_dwordx4 {rname(d,4)}, {rname(voff)}, {rname(srd,4)}, {so} offen offset:{off}{flags}", 'vm_ld',
               rd=[voff] + rng(srd, 4) + ([] if soff is None else [soff]), wr=rng(d, 4), **m)
def bdma(voff, srd, soff, off, flags="", **m):
    so = '0' if soff is None else rname(soff)
    return Ins(f"buffer_load_dwordx4 {rname(voff)}, {rname(srd,4)}, {so} offen offset:{off}{flags} lds", 'vm_dma',
               rd=[voff, M0] + rng(srd, 4) + ([] if soff is None else [soff]), **m)
def bstore(d, voff, srd, soff, off, flags="", **m):
    so = '0' if soff is None else rname(soff)
    return Ins(f"buffer_store_dwordx4 {rname(d,4)}, {rname(voff)}, {rname(srd,4)}, {so} offen offset:{off}{flags}", 'vm_st',
               rd=[voff] + rng(d, 4) + rng(srd, 4) + ([] if soff is None else [soff]), data=set(rng(d, 4)), **m)
```

```python
import sys, math, struct, argparse
from asmlib import *

NAME = "standalone__gqa_softmax__near_ridge"
def f32bits(x): return struct.unpack("<I", struct.pack("<f", x))[0]

def build(d=(0, 12, 16), RK=8, RV=7, stamp=False, qpos=(None, 5, 11), pre_kv=2, budget=24, st_flags="", ld_flags="", q_flags="",
          pfcode=True, slow=True, thr_log2=30):
    E = Emitter()
    vLin, vK0, vK1, vVd, vRow, vFq, vFo = V(1), V(2), V(3), V(4), V(5), V(6), V(7)
    KR = [V(8 + i) for i in range(8)]
    VR = [V(16 + i) for i in range(4)]
    L = [V(20), V(21), V(22)]
    NM = [V(23), V(24), V(25)]
    T0, T1, T2, T3 = V(26), V(27), V(28), V(29)
    RC = [V(30), V(31), V(112)]
    SB = [V(32), V(48)]
    NEG = [V(64), V(80), V(96)]
    TP = V(113)
    ET = V(116)
    O = [A(0), V(128), V(192)]
    QF = [A(64), A(96), A(128)]
    KF, VF = A(160), A(192)
    DUM = A(224)
    LAND = [V(192), V(128), V(192)]
    sQ, sK, sV, sO, sC = S(12), S(16), S(20), S(24), S(28)
    sW, sMK, sMV, sScale, sMask = S(32), S(33), S(34), S(35), S(36)
    sT = [S(40 + i) for i in range(16)]
    sQo = [[S(56 + 2 * t), S(57 + 2 * t)] for t in range(3)]
    sFl = [S(64), S(66), S(68)]
    KBASE, VBASE = 0, 65536
    STG = VBASE + RV * 8192
    STGW = 8704
    LDS = STG + 4 * STGW
    assert RK * 8192 <= 65536 and LDS <= 163840
    nstamp = [0]
    def do_stamp():
        if not stamp: return
        k = nstamp[0]; nstamp[0] += 1
        assert k < 10
        E.raw(op(f"s_memrealtime s[{80+2*k}:{81+2*k}]", 'smem'))
        E.raw(op("s_waitcnt lgkmcnt(0)", 'wait')); E.lgkm = []

    NS = max(d) + 16
    U = [(s, t) for s in range(NS) for t in range(3) if d[t] <= s < d[t] + 16]
    NU = len(U); assert NU == 48
    qk0 = lambda i: 0 if i == 0 else 8 + 16 * (i - 1)
    pv0 = lambda i: 16 + 16 * i if i < NU - 1 else 8 + 16 * (NU - 1)
    first_of_step = {}; last_of_step = {}
    for i, (s, t) in enumerate(U):
        first_of_step.setdefault(s, i); last_of_step[s] = i
    first_of_tile = {}; last_of_tile = {}
    for i, (s, t) in enumerate(U):
        first_of_tile.setdefault(t, i); last_of_tile[t] = i
    def cinit(i):
        return i >= first_of_tile[U[i][1]] + 2
    M = [None] * 768
    for i, (s, t) in enumerate(U):
        sb = SB[i % 2]
        for ks in range(8):
            c = sb if ks else (NEG[t] if cinit(i) else None)
            M[qk0(i) + ks] = mfma(sb, KF + 4 * ks, QF[t] + 4 * ks, c)
        for kk in range(2):
            for dt in range(4):
                o = O[t] + 16 * dt
                c = None if (i == first_of_tile[t] and kk == 0) else o
                M[pv0(i) + 4 * kk + dt] = mfma(o, VF + 4 * (4 * kk + dt), sb + 8 * kk, c)
    assert all(m is not None for m in M)

    def kread(s, ks): return ds_read128(KF + 4 * ks, KR[ks], KBASE + (s % RK) * 8192)
    def vread(s, kk, dt, j): return ds_readtr(VF + 4 * (4 * kk + dt) + 2 * j, VR[dt], (s % RV) * 8192 + (kk * 16 + j * 8) * 256)
    pinned = [[] for _ in range(768)]
    Kreads = {}; Vreads = {}
    for s in range(1, NS):
        i = last_of_step[s - 1]
        Kreads[s] = [kread(s, ks) for ks in range(8)]
        for ks in range(8): pinned[qk0(i) + ks].append(Kreads[s][ks])
        Vreads[s] = []
        for kk in range(2):
            for dt in range(4):
                for j in range(2):
                    r = vread(s, kk, dt, j); Vreads[s].append(r); pinned[pv0(i) + 4 * kk + dt].append(r)
    Vreads[0] = []
    for kk in range(2):
        for dt in range(4):
            for j in range(2):
                r = vread(0, kk, dt, j); Vreads[0].append(r); pinned[8 + 4 * kk + dt].insert(0, r)

    bars = {}
    Kd = {}; Vd = {}; Qd = {}
    def kdma(s):
        ops = [salu(f"s_add_u32 m0, {rname(sMK)}, {(s % RK) * 8192}", rd=[sMK], wr=[M0]),
               bdma(vK0, sK, sT[s % 16], 0, ld_flags), bdma(vK1, sK, sT[s % 16], 1024, ld_flags)]
        Kd[s] = ops[1:]; return ops
    def vdma(s):
        ops = [salu(f"s_add_u32 m0, {rname(sMV)}, {(s % RV) * 8192}", rd=[sMV], wr=[M0]),
               bdma(vVd, sV, sT[s % 16], 0, ld_flags), bdma(vVd, sV, sT[s % 16], 1024, ld_flags)]
        Vd[s] = ops[1:]; return ops
    def qld(t):
        ops = [bload(LAND[t] + 4 * i, vLin, sQ, sQo[t][i // 4], (i % 4) * 1024, q_flags) for i in range(8)]
        Qd[t] = ops; return ops
    dma = []
    for s in range(NS + 1):
        for t in (1, 2):
            if qpos[t] == s: dma += qld(t)
        if s + 1 < NS and s + 1 > pre_kv:
            ops = kdma(s + 1)
            if s + 1 >= RK: ops[0].meta['after_bar'] = s + 1 - RK + (1 if s + 1 - RK <= 1 else 0)
            dma += ops
        if s < NS and s >= pre_kv:
            ops = vdma(s)
            if s >= RV: ops[0].meta['after_bar'] = s - RV + 1
            dma += ops

    streams = []
    def prescale_ops(t, packed=False):
        ops = []
        for i in range(8):
            for j in range(4):
                x = LAND[t] + 4 * i + j
                a, b = (T0, T1) if j % 2 == 0 else (T2, T3)
                ops.append(valu("v_lshlrev_b32", a, "16", x, may_wait=True))
                ops.append(valu("v_and_b32", b, sMask, x))
                ops.append(valu("v_mul_f32", a, sScale, a))
                ops.append(valu("v_mul_f32", b, sScale, b))
                ops.append(valu("v_cvt_pk_bf16_f32", x, a, b))
            ops.append(ds_write128(vRow, LAND[t] + 4 * i, i * 1088))
        return ops
    def qfrag_reads(t): return [ds_read128(QF[t] + 4 * ks, vFq, ks * 32) for ks in range(8)]

    sm_last = {}
    for i, (s, t) in enumerate(U):
        sb = SB[i % 2]; ops = []
        e0 = qk0(i) + 7
        if i == first_of_tile[t]:
            m = T0
            ops.append(valu("v_max3_f32", T0, sb, sb + 1, sb + 2))
            ops.append(valu("v_max3_f32", T1, sb + 3, sb + 4, sb + 5))
            for r in (6, 10):
                ops.append(valu("v_max3_f32", T0, T0, sb + r, sb + r + 1))
                ops.append(valu("v_max3_f32", T1, T1, sb + r + 2, sb + r + 3))
            ops.append(valu("v_max3_f32", T0, T0, sb + 14, sb + 15))
            ops.append(valu("v_max_f32", T0, T0, T1))
            ops.append(valu("v_mov_b32", T1, T0))
            ops.append(op(f"v_permlane32_swap_b32 {rname(T0)}, {rname(T1)}", 'perm', rd=[T0, T1], wr=[T0, T1]))
            ops.append(valu("v_max_f32", T0, T0, T1))
            ops.append(valu("v_sub_f32", NM[t], "0", T0))
            for o_ in ops: o_.deadline = pv0(i); o_.meta['tmp'] = True
        body = []
        for j in range(8):
            a, b = sb + 2 * j, sb + 2 * j + 1
            dl = pv0(i) + (0 if j < 4 else 4)
            grp = []
            if not cinit(i):
                grp += [valu("v_add_f32", a, NM[t], a), valu("v_add_f32", b, NM[t], b)]
            grp += [valu("v_exp_f32", a, a, kind='trans'), valu("v_exp_f32", b, b, kind='trans'),
                    valu("v_add_f32", L[t], a, L[t]), valu("v_add_f32", L[t], b, L[t]),
                    valu("v_cvt_pk_bf16_f32", sb + (j if j < 4 else 4 + j), a, b)]
            for o_ in grp: o_.deadline = dl
            body += grp
        ops += body
        if i == first_of_tile[t]:
            nxt = [k for k in range(i + 1, NU) if U[k][1] == t and cinit(k)][0]
            mv = [valu("v_mov_b32", NEG[t] + r, NM[t], deadline=qk0(nxt) - 1) for r in range(16)]
            ops += mv
        for o_ in ops: o_.earliest = e0
        sm_last[i] = body[-1]
        streams.append(ops)

    stg_users = []
    pre = {}
    for t in (1, 2):
        ops = prescale_ops(t); rd = qfrag_reads(t)
        dl = qk0(first_of_tile[t]) - 3
        n = len(ops) + 8
        for k, o_ in enumerate(ops + rd):
            o_.deadline = dl; o_.meta['bg'] = True; o_.meta['tmp'] = True
        ops[0].meta['after'] = [Qd[t][-1]]
        pre[t] = (ops, rd)
        stg_users.append((dl - 64, 'q', t))
    epi = {}
    def epilogue_ops(t, soff, last=False):
        ops = []
        l = L[t]
        ops.append(valu("v_mov_b32", TP, l))
        ops.append(op(f"v_permlane32_swap_b32 {rname(TP)}, {rname(l)}", 'perm', rd=[TP, l], wr=[TP, l]))
        ops.append(valu("v_add_f32", l, l, TP))
        ops.append(valu("v_rcp_f32", RC[t], l, kind='trans'))
        return ops
    def epilogue_check(t):
        thr = f32bits(2.0 ** thr_log2)
        return [op(f"v_cmp_nge_f32 vcc, {thr:#x}, {rname(L[t])}", 'valu', rd=[L[t]], wr=[VCC]),
                salu(f"s_mov_b64 {rname(sFl[t],2)}, vcc", rd=[VCC], wr=rng(sFl[t], 2))]
    def epilogue_body(t, soff, early=None):
        ops = []; wr = []
        k = 0
        for dt in range(4):
            for g in range(4):
                src = O[t] + 16 * dt + 4 * g
                grp = []
                if src >= 256:
                    tmp = ET + 4 * (k % 3); k += 1
                    for r in range(4): grp.append(valu("v_accvgpr_read_b32", tmp + r, src + r))
                    x = tmp
                else: x = src
                for r in range(4): grp.append(valu("v_mul_f32", x + r, RC[t], x + r))
                grp.append(valu("v_cvt_pk_bf16_f32", x, x, x + 1))
                grp.append(valu("v_cvt_pk_bf16_f32", x + 1, x + 2, x + 3))
                w = ds_write64(vFo, x, dt * 64 + g * 16); grp.append(w); wr.append(w)
                if early is not None:
                    for o_ in grp: o_.earliest = early + dt
                ops += grp
        rds = [ds_read128(O[t] + 4 * i, vRow, i * 1088) for i in range(8)]
        sts = [bstore(O[t] + 4 * i, vLin, sO, soff[i // 4], (i % 4) * 1024, st_flags, may_wait=True) for i in range(8)]
        ops += rds[:4]
        for i in range(8):
            if i + 4 < 8: ops.append(rds[i + 4])
            ops.append(sts[i])
        return ops, wr, rds
    for t in range(3):
        i = last_of_tile[t]
        a = epilogue_ops(t, sQo[t]) + epilogue_check(t)
        a[0].meta['after'] = [sm_last[i]]
        b, wr, rds = epilogue_body(t, sQo[t], early=pv0(i) + 4)
        ops = a + b
        for k, o_ in enumerate(ops): o_.deadline = 100000 + t; o_.meta['bg'] = True
        epi[t] = (ops, wr, rds)
        stg_users.append((pv0(i) + 4, 'o', t))
    stg_users.sort()
    prev_last = None
    for (_, kind, t) in stg_users:
        if kind == 'q':
            ops, rd = pre[t]; firstw = [o_ for o_ in ops if o_.kind == 'ds_w'][0]; lastr = rd[-1]
            streams.append(ops + rd)
        else:
            ops, wr, rds = epi[t]; firstw = wr[0]; lastr = rds[-1]
            streams.append(ops)
        if prev_last is not None: firstw.meta.setdefault('after', []).append(prev_last)
        prev_last = lastr

    post = [[] for _ in range(768)]
    def mkbar(s, need):
        def f():
            ops = []
            for kind, x in need:
                ops += (Kd if kind == 'K' else Vd)[x]
            c = E.wait_for(ops)
            b = op("s_barrier", 'bar'); E.raw(b); bars[s] = b
            return c + 4
        return f
    for s in range(1, NS):
        g = qk0(first_of_step[s])
        need = [('V', s)] + ([('K', s + 1)] if s + 1 < NS else [])
        if g > 8: post[g - 2].append(lambda s=s: E.wait_for(Kreads[s]))
        post[g - 1].append(mkbar(s, need))
    post[7].insert(0, mkbar(-1, [('V', 0)]))
    for s in range(NS):
        g = pv0(first_of_step[s])
        post[g - 1].append(lambda s=s: E.wait_for(Vreads[s]))

    e = E.emit
    e(salu(f"s_cmp_ge_u32 s2, 256", rd=[S(2)]))
    e(salu("s_cbranch_scc1 Lend"))
    E.raw(op("s_load_dwordx8 s[4:11], s[0:1], 0", 'smem'))
    if stamp: E.raw(op("s_load_dwordx2 s[78:79], s[0:1], 40", 'smem'))
    if stamp: E.raw(op("s_memrealtime s[100:101]", 'smem'))
    lane, tA, tB, tC = V(113), V(114), V(115), V(116)
    e(valu("v_lshrrev_b32", tA, "6", V(0)))
    e(valu("v_and_b32", lane, "63", V(0)))
    e(op(f"v_readfirstlane_b32 {rname(sW)}, {rname(tA)}", 'rfl', rd=[tA], wr=[sW]))
    e(valu("v_lshlrev_b32", vLin, "4", lane))
    e(salu("s_and_b32 s70, s2, 7", wr=[S(70)]))
    e(salu("s_lshr_b32 s71, s2, 3", wr=[S(71)]))
    e(salu("s_lshl_b32 s70, s70, 3", wr=[S(70)]))
    e(salu("s_lshr_b32 s72, s71, 2", wr=[S(72)]))
    e(salu("s_add_u32 s70, s70, s72", wr=[S(70)]))
    e(salu("s_and_b32 s71, s71, 3", wr=[S(71)]))
    e(salu("s_lshl_b32 s72, s70, 2", wr=[S(72)]))
    e(salu("s_add_u32 s72, s72, s71", wr=[S(72)]))
    e(salu("s_mul_i32 s73, s72, 98304", wr=[S(73)]))
    e(salu("s_lshl_b32 s74, s70, 17", wr=[S(74)]))
    e(valu("v_lshrrev_b32", tB, "4", lane))
    e(valu("v_lshl_add_u32", tC, tA, "3", tB))
    e(valu("v_and_b32", vK0, "15", lane))
    e(valu("v_xor_b32", vK1, vK0, tC))
    e(valu("v_and_b32", vK1, "15", vK1))
    e(valu("v_lshlrev_b32", tC, "8", tC))
    e(valu("v_lshl_add_u32", vK0, vK1, "4", tC))
    e(valu("v_xor_b32", vK1, "64", vK0))
    e(salu(f"s_lshl_b32 {rname(sMK)}, {rname(sW)}, 11", rd=[sW], wr=[sMK]))
    e(salu(f"s_lshl_b32 {rname(sQo[0][0])}, {rname(sW)}, 13", rd=[sW], wr=[sQo[0][0]]))
    e(salu(f"s_add_u32 {rname(sQo[0][1])}, {rname(sQo[0][0])}, 4096", wr=[sQo[0][1]]))
    for k in range(0, max(pre_kv, 1) + 1): e(salu(f"s_mov_b32 {rname(sT[k])}, {k*8192}", wr=[sT[k]]))
    e(salu(f"s_mov_b32 s18, 131072")); e(salu(f"s_mov_b32 s19, 0x20000"))
    e(salu(f"s_mov_b32 s14, 98304")); e(salu(f"s_mov_b32 s15, 0x20000"))
    E.raw(op("s_waitcnt lgkmcnt(0)", 'wait'))
    e(salu("s_add_u32 s16, s6, s74")); e(salu("s_addc_u32 s17, s7, 0"))
    e(salu("s_add_u32 s12, s4, s73")); e(salu("s_addc_u32 s13, s5, 0"))
    for o_ in kdma(0) + kdma(1): e(o_)
    for o_ in qld(0): e(o_)
    e(salu("s_add_u32 s20, s8, s74")); e(salu("s_addc_u32 s21, s9, 0"))
    e(salu(f"s_mov_b32 s22, 131072")); e(salu(f"s_mov_b32 s23, 0x20000"))
    e(salu(f"s_add_u32 {rname(sMV)}, {rname(sMK)}, {VBASE}", wr=[sMV]))
    lr, lc = V(117), V(118)
    e(valu("v_bfe_u32", lr, lane, "2", "2"))
    e(valu("v_and_b32", lc, "3", lane))
    e(valu("v_xor_b32", vVd, lr, tB))
    e(valu("v_lshl_add_u32", vVd, vVd, "6", tC))
    e(valu("v_lshl_add_u32", vVd, lc, "4", vVd))
    for o_ in vdma(0): e(o_)
    if pfcode:
        E.raw(op("s_getpc_b64 s[28:29]", 'salu'))
        E.label("Lpc")
        e(salu("s_mov_b32 s30, Lcode_end-Lpc")); e(salu("s_mov_b32 s31, 0x20000"))
        e(salu("s_lshl_b32 s75, s71, 13")); e(salu(f"s_add_u32 s75, s75, {rname(sMK)}", rd=[sMK], wr=[S(75)]))
        e(bload(DUM, vLin, sC, S(75), 0)); e(bload(DUM + 4, vLin, sC, S(75), 1024))
    for s in range(2, pre_kv + 1):
        for o_ in kdma(s): e(o_)
        for o_ in vdma(s - 1): e(o_)
    e(salu("s_add_u32 s24, s10, s73")); e(salu("s_addc_u32 s25, s11, 0"))
    e(salu(f"s_mov_b32 s26, 98304")); e(salu(f"s_mov_b32 s27, 0x20000"))
    c = math.log2(math.e) / math.sqrt(128.0)
    e(salu(f"s_mov_b32 {rname(sScale)}, {f32bits(c):#x}", wr=[sScale]))
    e(salu(f"s_mov_b32 {rname(sMask)}, 0xffff0000", wr=[sMask]))
    for k in range(max(pre_kv, 1) + 1, 16): e(salu(f"s_mov_b32 {rname(sT[k])}, {k*8192}", wr=[sT[k]]))
    for t in (1, 2):
        e(salu(f"s_add_u32 {rname(sQo[t][0])}, {rname(sQo[0][0])}, {t*32768}", wr=[sQo[t][0]]))
        e(salu(f"s_add_u32 {rname(sQo[t][1])}, {rname(sQo[0][0])}, {t*32768+4096}", wr=[sQo[t][1]]))
    e(salu(f"s_mul_i32 s76, {rname(sW)}, {STGW}", rd=[sW], wr=[S(76)]))
    e(salu(f"s_add_u32 s76, s76, {STG}", wr=[S(76)]))
    e(salu(f"s_mov_b32 s77, 272", wr=[S(77)]))
    h, r31, l15 = V(119), V(120), V(121)
    e(valu("v_lshrrev_b32", h, "5", lane))
    e(valu("v_and_b32", r31, "31", lane))
    e(valu("v_and_b32", l15, "15", lane))
    e(valu("v_mul_u32_u24", vRow, S(77), tB))
    e(valu("v_lshl_add_u32", vRow, l15, "4", vRow))
    e(valu("v_add_u32", vRow, S(76), vRow))
    e(valu("v_mul_u32_u24", vFo, S(77), r31))
    e(valu("v_add_u32", vFo, S(76), vFo))
    e(valu("v_lshl_add_u32", vFq, h, "4", vFo))
    e(valu("v_lshl_add_u32", vFo, h, "3", vFo))
    e(valu("v_xor_b32", KR[0], h, l15))
    e(valu("v_lshlrev_b32", KR[0], "4", KR[0]))
    e(valu("v_lshl_add_u32", KR[0], r31, "8", KR[0]))
    for ks in range(1, 8): e(valu("v_xor_b32", KR[ks], str(ks * 32), KR[0]))
    e(valu("v_lshl_add_u32", VR[0], h, "2", lr))
    e(valu("v_lshlrev_b32", VR[0], "8", VR[0]))
    e(valu("v_lshl_add_u32", VR[0], lr, "6", VR[0]))
    e(valu("v_and_b32", tC, "1", tB))
    e(valu("v_lshl_add_u32", VR[0], tC, "5", VR[0]))
    e(valu("v_lshl_add_u32", VR[0], lc, "3", VR[0]))
    e(valu("v_add_u32", VR[0], str(VBASE), VR[0]))
    for dt in range(1, 4): e(valu("v_xor_b32", VR[dt], str(dt * 64), VR[0]))
    for t in range(3): e(valu("v_mov_b32", L[t], "0"))
    do_stamp()
    for o_ in prescale_ops(0): e(o_)
    do_stamp()
    E.wait_for(Kd[0] + Kd[1])
    b = op("s_barrier", 'bar'); E.raw(b); bars[0] = b
    q0 = qfrag_reads(0)
    Kreads[0] = [kread(0, ks) for ks in range(8)]
    for ks in range(8): e(q0[ks]); e(Kreads[0][ks])

    heads = [0] * len(streams)
    dpos = [0]
    tmp_owner = [None]
    def avail(o_, g):
        if o_.earliest > g: return False
        for a in o_.meta.get('after', ()):
            if not a.done: return False
        ab = o_.meta.get('after_bar')
        if ab is not None and ab not in bars: return False
        return True
    def tmp_ok(k, o_):
        uses = bool((o_.rd | o_.wr) & {T0, T1, T2, T3})
        return (not uses) or tmp_owner[0] in (None, k)
    def after_emit(k, o_):
        uses = bool((o_.rd | o_.wr) & {T0, T1, T2, T3})
        if not uses: return
        if not (o_.wr & {T0, T1, T2, T3}): tmp_owner[0] = None
        else: tmp_owner[0] = k
    MEMK = ('ds_r', 'ds_w', 'vm_ld', 'vm_dma', 'vm_st')
    def pick(g, mem):
        best = None
        for k, st in enumerate(streams):
            if heads[k] >= len(st): continue
            o_ = st[heads[k]]
            if (o_.kind in MEMK) != mem: continue
            if not avail(o_, g) or not tmp_ok(k, o_) or not E.ready(o_): continue
            if best is None or o_.deadline < streams[best][heads[best]].deadline: best = k
        return best
    def force(g):
        c = 0
        again = True
        while again:
            again = False
            for k, st in enumerate(streams):
                while heads[k] < len(st) and st[heads[k]].deadline <= g:
                    o_ = st[heads[k]]
                    if not tmp_ok(k, o_):
                        ko = tmp_owner[0]
                        while tmp_owner[0] == ko:
                            x = streams[ko][heads[ko]]; c += E.emit(x); heads[ko] += 1; after_emit(ko, x)
                    assert avail(o_, g), (o_, g)
                    c += E.emit(o_); heads[k] += 1; after_emit(k, o_); again = True
        return c
    over = 0; gapcost = []
    stamp_gaps = set()
    if stamp:
        stamp_gaps = {qk0(first_of_tile[1]), qk0(first_of_tile[2]), pv0(last_of_tile[0]) + 7, pv0(last_of_tile[1]) + 7}
    carry = 0
    for g in range(768):
        carry += force(g)
        n0 = len(E.out)
        carry += E.emit(M[g]) - 8
        if g: gapcost.append(carry)
        if g == 0: do_stamp()
        used = 0
        for o_ in pinned[g]: used += E.emit(o_)
        nm = len(pinned[g])
        while dpos[0] < len(dma) and dma[dpos[0]].kind != 'salu' and nm < 2 and used + 4 <= budget:
            used += E.emit(dma[dpos[0]]); dpos[0] += 1; nm += 1
        while nm < 2 and used + 4 <= budget:
            k = pick(g, True)
            if k is None: break
            o_ = streams[k][heads[k]]; used += E.emit(o_); heads[k] += 1; nm += 1
        for f in post[g]: used += f()
        if g in stamp_gaps: do_stamp()
        if dpos[0] < len(dma) and dma[dpos[0]].kind == 'salu' and avail(dma[dpos[0]], g):
            used += E.emit(dma[dpos[0]]); dpos[0] += 1
        while True:
            k = pick(g, False)
            if k is None: break
            o_ = streams[k][heads[k]]
            if used + o_.cost > budget: break
            used += E.emit(o_); heads[k] += 1; after_emit(k, o_)
        carry = used
    assert dpos[0] == len(dma), (dpos[0], len(dma))
    do_stamp()
    while any(heads[k] < len(st) for k, st in enumerate(streams)):
        k = pick(10 ** 6, True)
        if k is None: k = pick(10 ** 6, False)
        if k is None:
            k = [k for k, st in enumerate(streams) if heads[k] < len(st) and avail(st[heads[k]], 10 ** 6)][0]
        o_ = streams[k][heads[k]]; E.emit(o_); heads[k] += 1; after_emit(k, o_)
    do_stamp()
    est = sum(max(32, 8 + c) for c in gapcost)
    sys.stderr.write(f"gaps over budget: {sum(1 for c in gapcost if c > 24)}  est main cycles {est}  nops {E.nnop} instrs {len(E.out)}\n")

    e(salu(f"s_or_b64 s[70:71], {rname(sFl[0],2)}, {rname(sFl[1],2)}", rd=rng(sFl[0], 4)))
    e(salu(f"s_or_b64 s[70:71], s[70:71], {rname(sFl[2],2)}", rd=rng(sFl[2], 2)))
    if slow: e(salu("s_cbranch_scc1 Lslow"))
    if stamp:
        E.raw(op("s_waitcnt vmcnt(0)", 'wait')); E.vm = []
        do_stamp()
        e(salu("s_mov_b32 s70, s78")); e(salu("s_mov_b32 s71, s79")); e(salu("s_mov_b32 s72, 0x100000")); e(salu("s_mov_b32 s73, 0x20000"))
        e(salu(f"s_lshl_b32 s74, s2, 2")); e(salu(f"s_add_u32 s74, s74, {rname(sW)}")); e(salu("s_lshl_b32 s74, s74, 6"))
        e(valu("v_mov_b32", V(40), S(74)))
        e(valu("v_mov_b32", V(41), S(100)))
        E.raw(op("buffer_store_dword v41, v40, s[68:71], 0 offen".replace("s[68:71]", "s[70:73]"), 'vm_st', rd=[V(40), V(41)])) if False else None
        for k in range(nstamp[0] + 1):
            src = S(100) if k == 0 else S(80 + 2 * (k - 1))
            e(valu("v_mov_b32", V(42 + k), src))
        e(salu("s_mov_b32 s68, s78")); e(salu("s_mov_b32 s69, s79")); e(salu("s_mov_b32 s70, 0x100000")); e(salu("s_mov_b32 s71, 0x20000"))
        for k in range(nstamp[0] + 1):
            E.raw(op(f"buffer_store_dword v{42+k}, v40, s[68:71], 0 offen offset:{4*k}", 'vm_st', rd=[V(40), V(42 + k)]))
    E.label("Lend")
    E.raw(op("s_endpgm", 'end'))

    if slow:
        def fence():
            E.raw(op("s_waitcnt vmcnt(0) lgkmcnt(0)", 'wait')); E.vm = []; E.lgkm = []
            E.nop(16)
        E.label("Lslow")
        fence()
        sTl, sSo0, sSo1, sJ, sJ2 = S(72), S(73), S(74), S(75), S(37)
        vKg, vVs = V(113), V(114)
        SVR = [V(8 + i) for i in range(4)]
        lane = V(115)
        e(valu("v_lshrrev_b32", lane, "4", vLin))
        e(valu("v_and_b32", vKg, "31", lane)); e(valu("v_lshlrev_b32", vKg, "8", vKg))
        e(valu("v_lshrrev_b32", lane, "5", lane)); e(valu("v_lshl_add_u32", vKg, lane, "4", vKg))
        e(valu("v_subrev_u32", vVs, sMK, vVd))
        e(salu(f"s_sub_u32 s77, s76, {VBASE}", wr=[S(77)]))
        for dt in range(4): e(valu("v_add_u32", SVR[dt], S(77), VR[dt]))
        e(salu(f"s_mov_b32 {rname(sTl)}, 0", wr=[sTl]))
        E.label("Lslow_tile")
        e(salu(f"s_cmp_eq_u64 {rname(sFl[0],2)}, 0"))
        e(salu("s_cbranch_scc1 Lslow_next"))
        e(salu(f"s_lshl_b32 {rname(sSo0)}, {rname(sTl)}, 15", wr=[sSo0]))
        e(salu(f"s_add_u32 {rname(sSo0)}, {rname(sSo0)}, {rname(sQo[0][0])}", wr=[sSo0]))
        e(salu(f"s_add_u32 {rname(sSo1)}, {rname(sSo0)}, 4096", wr=[sSo1]))
        for i in range(8): e(bload(LAND[1] + 4 * i, vLin, sQ, (sSo0, sSo1)[i // 4], (i % 4) * 1024))
        for o_ in prescale_ops(1): e(o_)
        for ks in range(8): e(ds_read128(QF[0] + 4 * ks, vFq, ks * 32))
        e(valu("v_mov_b32", T2, "0xff800000"))
        e(salu(f"s_mov_b32 {rname(sJ)}, 0", wr=[sJ]))
        fence()
        sb = SB[0]
        E.label("Lslow_p1")
        for ks in range(8): e(bload(KF + 4 * ks, vKg, sK, sJ, ks * 32))
        for ks in range(8): e(mfma(sb, KF + 4 * ks, QF[0] + 4 * ks, sb if ks else None))
        for r in range(0, 16, 2): e(valu("v_max3_f32", T2, T2, sb + r, sb + r + 1))
        e(salu(f"s_add_u32 {rname(sJ)}, {rname(sJ)}, 8192", wr=[sJ]))
        fence()
        e(salu(f"s_cmp_lt_u32 {rname(sJ)}, 131072")); e(salu("s_cbranch_scc1 Lslow_p1"))
        e(valu("v_mov_b32", T1, T2))
        e(op(f"v_permlane32_swap_b32 {rname(T2)}, {rname(T1)}", 'perm', rd=[T2, T1], wr=[T2, T1]))
        e(valu("v_max_f32", T2, T2, T1))
        e(valu("v_sub_f32", T2, "0", T2))
        for r in range(16): e(valu("v_mov_b32", NEG[0] + r, T2))
        for r in range(64): e(valu("v_mov_b32", O[2] + r, "0"))
        e(valu("v_mov_b32", L[2], "0"))
        e(salu(f"s_mov_b32 {rname(sJ)}, 0", wr=[sJ]))
        fence()
        E.label("Lslow_p2")
        e(salu(f"s_add_u32 {rname(sJ2)}, {rname(sJ)}, 4096", wr=[sJ2]))
        for ks in range(8): e(bload(KF + 4 * ks, vKg, sK, sJ, ks * 32))
        for hh in range(2):
            e(salu(f"s_add_u32 m0, s76, {hh*4096}", wr=[M0]))
            for i in range(4): e(bdma(vVs, sV, (sJ, sJ2)[hh], i * 1024))
        fence()
        for kk in range(2):
            for dt in range(4):
                for j in range(2): e(ds_readtr(VF + 4 * (4 * kk + dt) + 2 * j, SVR[dt], (kk * 16 + j * 8) * 256))
        for ks in range(8): e(mfma(sb, KF + 4 * ks, QF[0] + 4 * ks, sb if ks else NEG[0]))
        for j in range(8):
            a, b = sb + 2 * j, sb + 2 * j + 1
            for o_ in [valu("v_exp_f32", a, a, kind='trans'), valu("v_exp_f32", b, b, kind='trans'),
                       valu("v_add_f32", L[2], a, L[2]), valu("v_add_f32", L[2], b, L[2]),
                       valu("v_cvt_pk_bf16_f32", sb + (j if j < 4 else 4 + j), a, b)]: e(o_)
        for kk in range(2):
            for dt in range(4): e(mfma(O[2] + 16 * dt, VF + 4 * (4 * kk + dt), sb + 8 * kk, O[2] + 16 * dt))
        e(salu(f"s_add_u32 {rname(sJ)}, {rname(sJ)}, 8192", wr=[sJ]))
        fence()
        e(salu(f"s_cmp_lt_u32 {rname(sJ)}, 131072")); e(salu("s_cbranch_scc1 Lslow_p2"))
        for o_ in epilogue_ops(2, None): e(o_)
        for o_ in epilogue_body(2, (sSo0, sSo1))[0]: e(o_)
        fence()
        E.label("Lslow_next")
        e(salu(f"s_mov_b64 {rname(sFl[0],2)}, {rname(sFl[1],2)}"))
        e(salu(f"s_mov_b64 {rname(sFl[1],2)}, {rname(sFl[2],2)}"))
        e(salu(f"s_add_u32 {rname(sTl)}, {rname(sTl)}, 1", wr=[sTl]))
        e(salu(f"s_cmp_lt_u32 {rname(sTl)}, 3")); e(salu("s_cbranch_scc1 Lslow_tile"))
        E.raw(op("s_endpgm", 'end'))

    hdr = open("cdna_kernels/" + NAME + ".s.ref").read().split("\n")
    top = [l for l in hdr if l.startswith(";") and "@launch" not in l and not l.startswith("; Override") and not l.startswith("; grid=")]
    txt = "\n".join(top) + f"\n; @launch grid=(256,1,1) block=(256,1,1) lds={LDS}\n"
    txt += f""".amdgcn_target "amdgcn-amd-amdhsa--gfx950"
.text
.globl {NAME}_kernel
.p2align 8
.type {NAME}_kernel,@function
{NAME}_kernel:
""" + E.text() + f"""Lcode_end:
.section .rodata,"a"
.p2align 6
.amdhsa_kernel {NAME}_kernel
  .amdhsa_next_free_vgpr 512
  .amdhsa_next_free_sgpr 102
  .amdhsa_accum_offset 256
  .amdhsa_group_segment_fixed_size 0
  .amdhsa_kernarg_size 48
  .amdhsa_user_sgpr_count 2
  .amdhsa_user_sgpr_kernarg_segment_ptr 1
  .amdhsa_system_sgpr_workgroup_id_x 1
.end_amdhsa_kernel
"""
    return txt, LDS

META = """
.amdgpu_metadata
---
amdhsa.version: [1, 2]
amdhsa.kernels:
  - .name: {n}
    .symbol: {n}.kd
    .kernarg_segment_size: 48
    .kernarg_segment_align: 8
    .group_segment_fixed_size: 0
    .private_segment_fixed_size: 0
    .wavefront_size: 64
    .sgpr_count: 102
    .vgpr_count: 512
    .max_flat_workgroup_size: 256
    .args:
      - {{.name: kernargs, .size: 48, .offset: 0, .value_kind: by_value}}
...
.end_amdgpu_metadata
"""
def write(name, **kw):
    import subprocess
    txt, lds = build(**kw)
    open(name + ".s", "w").write(txt)
    open(name + ".full.s", "w").write(txt + META.format(n=NAME + "_kernel"))
    r = subprocess.run(["clang", "-x", "assembler", "-target", "amdgcn-amd-amdhsa", "-mcpu=gfx950", name + ".full.s", "-o", name + ".co"], capture_output=True, text=True)
    if r.returncode: print(r.stderr[:3000]); sys.exit(1)
    return lds

if __name__ == "__main__":
    lds = write("k1")
    lds = write("k1s", stamp=True)
    print("lds", lds)
```

```python
def V(n): return n
def A(n): return 256 + n
def S(n): return 1000 + n
M0 = 2000
VCC = 2001
def vr(n, c=1): return [V(n + i) for i in range(c)]
def ar(n, c=1): return [A(n + i) for i in range(c)]
def rname(r, c=1):
    if r < 256: p, n = 'v', r
    elif r < 512: p, n = 'a', r - 256
    else: p, n = 's', r - 1000
    return f"{p}{n}" if c == 1 else f"{p}[{n}:{n+c-1}]"
def rng(r, c): return list(range(r, r + c))

VALU_KINDS = ('valu', 'trans', 'perm', 'rfl')
class Ins:
    def __init__(s, text, kind, rd=(), wr=(), cost=None, **meta):
        s.text, s.kind, s.rd, s.wr = text, kind, set(rd), set(wr)
        s.cost = cost if cost is not None else (8 if kind in ('trans', 'mfma') else 4)
        s.meta = meta
        s.ws = 1
        s.earliest = meta.get('earliest', -1)
        s.deadline = meta.get('deadline', 1 << 30)
        s.done = False
    def __repr__(s): return s.text

def mfma(d, a, b, c):
    ct = '0' if c is None else rname(c, 16)
    i = Ins(f"v_mfma_f32_32x32x16_bf16 {rname(d,16)}, {rname(a,4)}, {rname(b,4)}, {ct}", 'mfma',
            rd=rng(a, 4) + rng(b, 4) + ([] if c is None else rng(c, 16)), wr=rng(d, 16))
    i.ab = set(rng(a, 4) + rng(b, 4)); i.c = c; i.d = d; i.n = 16; i.hz = (12, 10, 7)
    return i

def mfma16(d, a, b, c):
    ct = '0' if c is None else rname(c, 4)
    i = Ins(f"v_mfma_f32_16x16x32_bf16 {rname(d,4)}, {rname(a,4)}, {rname(b,4)}, {ct}", 'mfma',
            rd=rng(a, 4) + rng(b, 4) + ([] if c is None else rng(c, 4)), wr=rng(d, 4))
    i.ab = set(rng(a, 4) + rng(b, 4)); i.c = c; i.d = d; i.n = 4; i.hz = (8, 6, 3)
    return i

class Emitter:
    def __init__(s):
        s.out = []
        s.pos = []
        s.cur = 0
        s.lgkm = []
        s.vm = []
        s.nnop = 0
        s.window = 24
    def need(s, ins):
        n = 0
        k = len(s.out) - 1
        while k >= 0 and s.cur - s.pos[k] <= s.window:
            p = s.out[k]; gap = s.cur - s.pos[k] - p.ws
            req = 0
            pk, ck = p.kind, ins.kind
            if pk in VALU_KINDS:
                w = p.wr
                if ck == 'mfma' and (w & ins.rd): req = max(req, 2)
                if pk == 'trans' and ck != 'trans' and (w & ins.rd): req = max(req, 1)
                if ck == 'perm' and (w & ins.rd): req = max(req, 2)
                if ck == 'rfl' and (w & ins.rd): req = max(req, 1)
                sw = {r for r in w if r >= 1000}
                if sw & ins.rd:
                    if ck in VALU_KINDS: req = max(req, 2)
                    elif ck == 'salu': req = max(req, 4)
                    else: req = max(req, 5)
            if pk == 'mfma':
                w = p.wr
                h_rd, h_c, h_war = p.hz
                if ck == 'mfma':
                    same = ins.c == p.d and ins.n == p.n
                    if w & ins.ab: req = max(req, h_rd)
                    if ins.c is not None and (w & set(rng(ins.c, ins.n))) and not same: req = max(req, h_c)
                    if not same and (w & ins.wr): req = max(req, h_rd)
                elif w & (ins.rd | ins.wr): req = max(req, h_rd)
                if p.c is not None and ck != 'mfma' and (set(rng(p.c, p.n)) & ins.wr): req = max(req, h_war)
            if pk == 'salu' and M0 in p.wr and M0 in ins.rd and ck != 'salu': req = max(req, 1)
            if pk in ('vm_st', 'ds_w') and (p.meta.get('data', set()) & ins.wr): req = max(req, 2)
            n = max(n, req - gap)
            k -= 1
        return n
    def waits_needed(s, ins):
        res = []
        touch = ins.rd | ins.wr
        for q in (s.lgkm, s.vm):
            idx = -1
            for j, p in enumerate(q):
                if p.wr & touch: idx = j
            res.append(None if idx < 0 else len(q) - 1 - idx)
        return res
    def raw(s, ins):
        s.out.append(ins); s.pos.append(s.cur); s.cur += ins.ws; ins.done = True
        if ins.kind in ('ds_r', 'ds_w'): s.lgkm.append(ins)
        if ins.kind in ('vm_ld', 'vm_dma', 'vm_st'): s.vm.append(ins)
    def nop(s, n):
        while n > 0:
            k = min(n, 8)
            i = Ins(f"s_nop {k-1}", 'nop', cost=4 * k); i.ws = k
            s.raw(i); n -= k; s.nnop += k
    def waitcnt(s, lg=None, vm=None):
        if lg is not None and lg >= len(s.lgkm): lg = None
        if vm is not None and vm >= len(s.vm): vm = None
        if lg is None and vm is None: return 0
        parts = []
        if vm is not None:
            vm = min(vm, 63)
            parts.append(f"vmcnt({vm})"); s.vm = s.vm[len(s.vm) - vm:] if vm else []
        if lg is not None:
            lg = min(lg, 15)
            parts.append(f"lgkmcnt({lg})"); s.lgkm = s.lgkm[len(s.lgkm) - lg:] if lg else []
        s.raw(Ins("s_waitcnt " + " ".join(parts), 'wait'))
        return 4
    def count_after(s, ops):
        lg = vm = None
        for op in ops:
            if op in s.lgkm:
                n = len(s.lgkm) - 1 - s.lgkm.index(op); lg = n if lg is None else min(lg, n)
            if op in s.vm:
                n = len(s.vm) - 1 - s.vm.index(op); vm = n if vm is None else min(vm, n)
        return lg, vm
    def wait_for(s, ops):
        for op in ops: assert op.done, op
        lg, vm = s.count_after(ops)
        return s.waitcnt(lg, vm)
    def ready(s, ins):
        if s.need(ins) > 0: return False
        lg, vm = s.waits_needed(ins)
        return (lg is None and vm is None) or ins.meta.get('may_wait', False)
    def emit(s, ins):
        c = 0
        lg, vm = s.waits_needed(ins)
        if lg is not None and lg > 15: lg = 15 if False else lg
        c += s.waitcnt(lg, vm)
        n = s.need(ins)
        if n > 0: s.nop(n); c += 4 * n
        s.raw(ins)
        return c + ins.cost
    def label(s, name):
        i = Ins(f"{name}:", 'label', cost=0); i.ws = 0; s.raw(i)
    def text(s):
        return "\n".join(("" if i.kind == 'label' else "    ") + i.text for i in s.out) + "\n"

def op(text, kind, rd=(), wr=(), **m): return Ins(text, kind, rd, wr, **m)
def salu(text, rd=(), wr=(), **m): return Ins(text, 'salu', rd, wr, **m)
def valu(name, d, *src, kind='valu', **m):
    t = f"{name} {rname(d)}, " + ", ".join(x if isinstance(x, str) else rname(x) for x in src)
    return Ins(t, kind, rd=[x for x in src if not isinstance(x, str)], wr=[d], **m)
def ds_read128(d, addr, off, **m): return Ins(f"ds_read_b128 {rname(d,4)}, {rname(addr)} offset:{off}", 'ds_r', rd=[addr], wr=rng(d, 4), **m)
def ds_readtr(d, addr, off, **m): return Ins(f"ds_read_b64_tr_b16 {rname(d,2)}, {rname(addr)} offset:{off}", 'ds_r', rd=[addr], wr=rng(d, 2), **m)
def ds_write128(addr, d, off, **m): return Ins(f"ds_write_b128 {rname(addr)}, {rname(d,4)} offset:{off}", 'ds_w', rd=[addr] + rng(d, 4), data=set(rng(d, 4)), cost=16, **m)
def ds_write64(addr, d, off, **m): return Ins(f"ds_write_b64 {rname(addr)}, {rname(d,2)} offset:{off}", 'ds_w', rd=[addr] + rng(d, 2), data=set(rng(d, 2)), cost=8, **m)
def bload(d, voff, srd, soff, off, flags="", **m):
    so = '0' if soff is None else rname(soff)
    return Ins(f"buffer_load_dwordx4 {rname(d,4)}, {rname(voff)}, {rname(srd,4)}, {so} offen offset:{off}{flags}", 'vm_ld',
               rd=[voff] + rng(srd, 4) + ([] if soff is None else [soff]), wr=rng(d, 4), **m)
def bdma(voff, srd, soff, off, flags="", **m):
    so = '0' if soff is None else rname(soff)
    return Ins(f"buffer_load_dwordx4 {rname(voff)}, {rname(srd,4)}, {so} offen offset:{off}{flags} lds", 'vm_dma',
               rd=[voff, M0] + rng(srd, 4) + ([] if soff is None else [soff]), **m)
def bstore(d, voff, srd, soff, off, flags="", **m):
    so = '0' if soff is None else rname(soff)
    return Ins(f"buffer_store_dwordx4 {rname(d,4)}, {rname(voff)}, {rname(srd,4)}, {so} offen offset:{off}{flags}", 'vm_st',
               rd=[voff] + rng(d, 4) + rng(srd, 4) + ([] if soff is None else [soff]), data=set(rng(d, 4)), cost=16, **m)
```

```python
import sys, math, struct, argparse
from asmlib import *

NAME = "standalone__gqa_softmax__near_ridge"
def f32bits(x): return struct.unpack("<I", struct.pack("<f", x))[0]

def build(d=(0, 12, 16), RK=8, RV=7, stamp=False, qpos=(None, 5, 11), pre_kv=2, budget=24, st_flags="", ld_flags="", q_flags="",
          pfcode=True, slow=True, thr_log2=30, rot=0, dbg=(), lagF=2.5, kfirst=1):
    E = Emitter()
    vLin, vK0, vK1, vVd, vRow, vFq, vFo = V(1), V(2), V(3), V(4), V(5), V(6), V(7)
    KR = [V(8 + i) for i in range(8)]
    VR = [V(16 + i) for i in range(4)]
    L = [V(20), V(21), V(22)]
    NM = [V(23), V(24), V(25)]
    T0, T1, T2, T3 = V(26), V(27), V(28), V(29)
    RC = [V(30), V(31), V(112)]
    SB = [V(32), V(48)]
    NEG = [V(64), V(80), V(96)]
    TP = V(113)
    ET = V(116)
    O = [A(0), V(128), V(192)]
    QF = [A(64), A(96), A(128)]
    KF, VF = A(160), A(192)
    DUM = A(224)
    LAND = [V(192), V(128), V(192)]
    sQ, sK, sV, sO, sC = S(12), S(16), S(20), S(24), S(28)
    sW, sMK, sMV, sScale, sMask = S(32), S(33), S(34), S(35), S(36)
    sT = [S(40 + i) for i in range(16)]
    sQo = [[S(56 + 2 * t), S(57 + 2 * t)] for t in range(3)]
    sFl = [S(64), S(66), S(68)]
    KBASE, VBASE = 0, 65536
    STG = VBASE + RV * 8192
    STGW = 8704
    LDS = STG + 4 * STGW
    assert RK * 8192 <= 65536 and LDS <= 163840
    nstamp = [0]
    def do_stamp(name='x'):
        if not stamp or name not in stamp: return
        k = nstamp[0]; nstamp[0] += 1
        if 'both' in stamp:
            E.raw(op(f"s_memtime s[{80+2*k}:{81+2*k}]", 'smem')); k += 1; nstamp[0] += 1
        assert k < 10
        E.raw(op(f"{'s_memtime' if 'cyc' in stamp else 's_memrealtime'} s[{80+2*k}:{81+2*k}]", 'smem'))
        E.raw(op("s_waitcnt lgkmcnt(0)", 'wait')); E.lgkm = []

    NS = max(d) + 16
    U = [(s, t) for s in range(NS) for t in range(3) if d[t] <= s < d[t] + 16]
    NU = len(U); assert NU == 48
    qk0 = lambda i: 0 if i == 0 else 8 + 16 * (i - 1)
    pv0 = lambda i: 16 + 16 * i if i < NU - 1 else 8 + 16 * (NU - 1)
    first_of_step = {}; last_of_step = {}
    for i, (s, t) in enumerate(U):
        first_of_step.setdefault(s, i); last_of_step[s] = i
    first_of_tile = {}; last_of_tile = {}
    for i, (s, t) in enumerate(U):
        first_of_tile.setdefault(t, i); last_of_tile[t] = i
    def cinit(i):
        return i >= first_of_tile[U[i][1]] + 2
    M = [None] * 768
    for i, (s, t) in enumerate(U):
        sb = SB[i % 2]
        for ks in range(8):
            c = sb if ks else (NEG[t] if cinit(i) else None)
            M[qk0(i) + ks] = mfma(sb, KF + 4 * ks, QF[t] + 4 * ks, c)
        for kk in range(2):
            for dt in range(4):
                o = O[t] + 16 * dt
                c = None if (i == first_of_tile[t] and kk == 0) else o
                M[pv0(i) + 4 * kk + dt] = mfma(o, VF + 4 * (4 * kk + dt), sb + 8 * kk, c)
    assert all(m is not None for m in M)

    def kread(s, ks): return ds_read128(KF + 4 * ks, KR[ks], KBASE + (s % RK) * 8192)
    def vread(s, kk, dt, j): return ds_readtr(VF + 4 * (4 * kk + dt) + 2 * j, VR[dt], (s % RV) * 8192 + (kk * 16 + j * 8) * 256)
    pinned = [[] for _ in range(768)]
    Kreads = {}; Vreads = {}
    for s in range(1, NS):
        i = last_of_step[s - 1]
        Kreads[s] = [kread(s, ks) for ks in range(8)]
        for ks in range(8): pinned[qk0(i) + ks].append(Kreads[s][ks])
        Vreads[s] = []
        for kk in range(2):
            for dt in range(4):
                for j in range(2):
                    r = vread(s, kk, dt, j); Vreads[s].append(r); pinned[pv0(i) + 4 * kk + dt].append(r)
    Vreads[0] = []
    for kk in range(2):
        for dt in range(4):
            for j in range(2):
                r = vread(0, kk, dt, j); Vreads[0].append(r); pinned[8 + 4 * kk + dt].insert(0, r)

    bars = {}
    Kd = {}; Vd = {}; Qd = {}
    def kdma(s):
        ops = [salu(f"s_add_u32 m0, {rname(sMK)}, {(s % RK) * 8192}", rd=[sMK], wr=[M0]),
               bdma(vK0, sK, sT[s % 16], 0, ld_flags), bdma(vK1, sK, sT[s % 16], 1024, ld_flags)]
        Kd[s] = ops[1:]; return ops
    def vdma(s):
        ops = [salu(f"s_add_u32 m0, {rname(sMV)}, {(s % RV) * 8192}", rd=[sMV], wr=[M0]),
               bdma(vVd, sV, sT[s % 16], 0, ld_flags), bdma(vVd, sV, sT[s % 16], 1024, ld_flags)]
        Vd[s] = ops[1:]; return ops
    def qld(t):
        ops = [bload(LAND[t] + 4 * i, vLin, sQ, sQo[t][i // 4], (i % 4) * 1024, q_flags) for i in range(8)]
        Qd[t] = ops; return ops
    dma = []
    for s in range(NS + 1):
        for t in (1, 2):
            if qpos[t] == s: dma += qld(t)
        if s + 1 < NS and s + 1 > pre_kv:
            ops = kdma(s + 1)
            if s + 1 >= RK: ops[0].meta['after_bar'] = s + 1 - RK + (1 if s + 1 - RK <= 1 else 0)
            dma += ops
        if s < NS and s >= pre_kv:
            ops = vdma(s)
            if s >= RV: ops[0].meta['after_bar'] = s - RV + 1
            dma += ops

    streams = []
    def prescale_ops(t, packed=False):
        ops = []
        for i in range(8):
            for j in range(4):
                x = LAND[t] + 4 * i + j
                a, b = (T0, T1) if j % 2 == 0 else (T2, T3)
                ops.append(valu("v_lshlrev_b32", a, "16", x, may_wait=True))
                ops.append(valu("v_and_b32", b, sMask, x))
                ops.append(valu("v_mul_f32", a, sScale, a))
                ops.append(valu("v_mul_f32", b, sScale, b))
                ops.append(valu("v_cvt_pk_bf16_f32", x, a, b))
            ops.append(ds_write128(vRow, LAND[t] + 4 * i, i * 1088))
        return ops
    def qfrag_reads(t): return [ds_read128(QF[t] + 4 * ks, vFq, ks * 32) for ks in range(8)]

    sm_last = {}
    for i, (s, t) in enumerate(U):
        sb = SB[i % 2]; ops = []
        e0 = qk0(i) + 7
        if i == first_of_tile[t]:
            m = T0
            ops.append(valu("v_max3_f32", T0, sb, sb + 1, sb + 2))
            ops.append(valu("v_max3_f32", T1, sb + 3, sb + 4, sb + 5))
            for r in (6, 10):
                ops.append(valu("v_max3_f32", T0, T0, sb + r, sb + r + 1))
                ops.append(valu("v_max3_f32", T1, T1, sb + r + 2, sb + r + 3))
            ops.append(valu("v_max3_f32", T0, T0, sb + 14, sb + 15))
            ops.append(valu("v_max_f32", T0, T0, T1))
            ops.append(valu("v_mov_b32", T1, T0))
            ops.append(op(f"v_permlane32_swap_b32 {rname(T0)}, {rname(T1)}", 'perm', rd=[T0, T1], wr=[T0, T1]))
            ops.append(valu("v_max_f32", T0, T0, T1))
            ops.append(valu("v_sub_f32", NM[t], "0", T0))
            for o_ in ops: o_.deadline = pv0(i); o_.meta['tmp'] = True
        Es = []; Fs = []
        for j in range(8):
            a, b = sb + 2 * j, sb + 2 * j + 1
            dl = pv0(i) + (0 if j < 4 else 4)
            grp = []
            if not cinit(i):
                grp += [valu("v_add_f32", a, NM[t], a), valu("v_add_f32", b, NM[t], b)]
            ea, eb = valu("v_exp_f32", a, a, kind='trans'), valu("v_exp_f32", b, b, kind='trans')
            grp += [ea, eb]
            for k_, o_ in enumerate(grp): o_.deadline = dl; o_.due = 2 * j + 0.01 * k_
            Es += grp
            grp = [valu("v_add_f32", L[t], a, L[t], after=[ea]), valu("v_add_f32", L[t], b, L[t], after=[eb]),
                   valu("v_cvt_pk_bf16_f32", sb + (j if j < 4 else 4 + j), a, b)]
            for k_, o_ in enumerate(grp): o_.deadline = dl; o_.due = 2 * j + lagF + 0.01 * k_
            Fs += grp
        ops += Es
        for o_ in ops + Fs: o_.earliest = e0
        streams.append(ops); streams.append(Fs)
        if i == first_of_tile[t]:
            nxt = [k for k in range(i + 1, NU) if U[k][1] == t and cinit(k)][0]
            mv = [valu("v_mov_b32", NEG[t] + r, NM[t], deadline=qk0(nxt) - 1) for r in range(16)]
            mv[0].meta['after'] = [Es[0]]
            streams.append(mv)
        sm_last[i] = Fs[-1]

    stg_users = []
    pre = {}
    for t in (1, 2):
        ops = prescale_ops(t); rd = qfrag_reads(t)
        dl = qk0(first_of_tile[t]) - 3
        n = len(ops) + 8
        for k, o_ in enumerate(ops + rd):
            o_.deadline = dl; o_.meta['bg'] = True; o_.meta['tmp'] = True
        ops[0].meta['after'] = [Qd[t][-1]]
        pre[t] = (ops, rd)
        stg_users.append((dl - 64, 'q', t))
    epi = {}
    def epilogue_ops(t, soff, last=False):
        ops = []
        l = L[t]
        ops.append(valu("v_mov_b32", TP, l))
        ops.append(op(f"v_permlane32_swap_b32 {rname(TP)}, {rname(l)}", 'perm', rd=[TP, l], wr=[TP, l]))
        ops.append(valu("v_add_f32", l, l, TP))
        ops.append(valu("v_rcp_f32", RC[t], l, kind='trans'))
        return ops
    def epilogue_check(t):
        thr = f32bits(2.0 ** thr_log2)
        return [op(f"v_cmp_nge_f32 vcc, {thr:#x}, {rname(L[t])}", 'valu', rd=[L[t]], wr=[VCC]),
                salu(f"s_mov_b64 {rname(sFl[t],2)}, vcc", rd=[VCC], wr=rng(sFl[t], 2))]
    def epilogue_body(t, soff, early=None):
        ops = []; wr = []
        k = 0
        for dt in range(4):
            for g in range(4):
                src = O[t] + 16 * dt + 4 * g
                grp = []
                if src >= 256:
                    tmp = ET + 4 * (k % 3); k += 1
                    for r in range(4): grp.append(valu("v_accvgpr_read_b32", tmp + r, src + r))
                    x = tmp
                else: x = src
                for r in range(4): grp.append(valu("v_mul_f32", x + r, RC[t], x + r))
                grp.append(valu("v_cvt_pk_bf16_f32", x, x, x + 1))
                grp.append(valu("v_cvt_pk_bf16_f32", x + 1, x + 2, x + 3))
                w = ds_write64(vFo, x, dt * 64 + g * 16); grp.append(w); wr.append(w)
                if early is not None:
                    for o_ in grp: o_.earliest = early + dt
                ops += grp
        rds = [ds_read128(O[t] + 4 * i, vRow, i * 1088) for i in range(8)]
        sts = [bstore(O[t] + 4 * i, vLin, sO, soff[i // 4], (i % 4) * 1024, st_flags, may_wait=True) for i in range(8)]
        ops += rds[:4]
        for i in range(8):
            if i + 4 < 8: ops.append(rds[i + 4])
            ops.append(sts[i])
        return ops, wr, rds
    for t in range(3):
        i = last_of_tile[t]
        a = epilogue_ops(t, sQo[t]) + epilogue_check(t)
        a[0].meta['after'] = [sm_last[i]]
        b, wr, rds = epilogue_body(t, sQo[t], early=pv0(i) + 4)
        ops = a + b
        for k, o_ in enumerate(ops): o_.deadline = 100000 + t; o_.meta['bg'] = True
        epi[t] = (ops, wr, rds)
        stg_users.append((pv0(i) + 4, 'o', t))
    stg_users.sort()
    prev_last = None
    for (_, kind, t) in stg_users:
        if kind == 'q':
            ops, rd = pre[t]; firstw = [o_ for o_ in ops if o_.kind == 'ds_w'][0]; lastr = rd[-1]
            streams.append(ops + rd)
        else:
            ops, wr, rds = epi[t]; firstw = wr[0]; lastr = rds[-1]
            streams.append(ops)
        if prev_last is not None: firstw.meta.setdefault('after', []).append(prev_last)
        prev_last = lastr

    post = [[] for _ in range(768)]
    def mkbar(s, need):
        def f():
            ops = []
            for kind, x in need:
                ops += (Kd if kind == 'K' else Vd)[x]
            c = 0
            while not all(o_.done for o_ in ops):
                assert avail(dma[dpos[0]], 10 ** 6), dma[dpos[0]]
                c += E.emit(dma[dpos[0]]); dpos[0] += 1
            c += E.wait_for(ops)
            b = op("s_barrier", 'bar'); E.raw(b); bars[s] = b
            return c + 4
        return f
    for s in range(1, NS):
        g = qk0(first_of_step[s])
        need = [('V', s)] + ([('K', s + 1)] if s + 1 < NS else [])
        if g > 8: post[g - 2].append(lambda s=s: E.wait_for(Kreads[s]))
        post[g - 1].append(mkbar(s, need))
    post[7].insert(0, mkbar(-1, [('V', 0)]))
    for s in range(NS):
        g = pv0(first_of_step[s])
        post[g - 1].append(lambda s=s: E.wait_for(Vreads[s]))

    e = E.emit
    e(salu(f"s_cmp_ge_u32 s2, 256", rd=[S(2)]))
    e(salu("s_cbranch_scc1 Lend"))
    E.raw(op("s_load_dwordx8 s[4:11], s[0:1], 0", 'smem'))
    if stamp: E.raw(op("s_load_dwordx2 s[78:79], s[0:1], 40", 'smem'))
    if stamp: E.raw(op(f"{'s_memtime' if 'cyc' in stamp else 's_memrealtime'} s[100:101]", 'smem'))
    lane, tA, tB, tC = V(113), V(114), V(115), V(116)
    e(valu("v_lshrrev_b32", tA, "6", V(0)))
    e(valu("v_and_b32", lane, "63", V(0)))
    e(op(f"v_readfirstlane_b32 {rname(sW)}, {rname(tA)}", 'rfl', rd=[tA], wr=[sW]))
    e(valu("v_lshlrev_b32", vLin, "4", lane))
    e(salu("s_and_b32 s70, s2, 7", wr=[S(70)]))
    e(salu("s_lshr_b32 s71, s2, 3", wr=[S(71)]))
    e(salu("s_lshl_b32 s70, s70, 3", wr=[S(70)]))
    e(salu("s_lshr_b32 s72, s71, 2", wr=[S(72)]))
    e(salu("s_add_u32 s70, s70, s72", wr=[S(70)]))
    e(salu("s_and_b32 s71, s71, 3", wr=[S(71)]))
    e(salu("s_lshl_b32 s72, s70, 2", wr=[S(72)]))
    e(salu("s_add_u32 s72, s72, s71", wr=[S(72)]))
    e(salu("s_mul_i32 s73, s72, 98304", wr=[S(73)]))
    e(salu("s_lshl_b32 s74, s70, 17", wr=[S(74)]))
    e(valu("v_lshrrev_b32", tB, "4", lane))
    e(valu("v_lshl_add_u32", tC, tA, "3", tB))
    e(valu("v_and_b32", vK0, "15", lane))
    e(valu("v_xor_b32", vK1, vK0, tC))
    e(valu("v_and_b32", vK1, "15", vK1))
    e(valu("v_lshlrev_b32", tC, "8", tC))
    e(valu("v_lshl_add_u32", vK0, vK1, "4", tC))
    e(valu("v_xor_b32", vK1, "64", vK0))
    e(salu(f"s_lshl_b32 {rname(sMK)}, {rname(sW)}, 11", rd=[sW], wr=[sMK]))
    e(salu(f"s_lshl_b32 {rname(sQo[0][0])}, {rname(sW)}, 13", rd=[sW], wr=[sQo[0][0]]))
    e(salu(f"s_add_u32 {rname(sQo[0][1])}, {rname(sQo[0][0])}, 4096", wr=[sQo[0][1]]))
    def tileoff(k):
        if not rot: e(salu(f"s_mov_b32 {rname(sT[k])}, {k*8192}", wr=[sT[k]]))
        else:
            e(salu(f"s_add_u32 {rname(sT[k])}, s38, {k*8192}", wr=[sT[k]]))
            e(salu(f"s_and_b32 {rname(sT[k])}, {rname(sT[k])}, 0x1ffff", wr=[sT[k]]))
    if rot > 0: e(salu(f"s_mul_i32 s38, s70, {rot*8192}"))
    if rot < 0: e(salu(f"s_mul_i32 s38, s71, {-rot*8192}"))
    for k in range(0, max(pre_kv, 1) + 1): tileoff(k)
    e(salu(f"s_mov_b32 s18, 131072")); e(salu(f"s_mov_b32 s19, 0x20000"))
    e(salu(f"s_mov_b32 s14, 98304")); e(salu(f"s_mov_b32 s15, 0x20000"))
    E.raw(op("s_waitcnt lgkmcnt(0)", 'wait'))
    do_stamp('karg')
    e(salu("s_add_u32 s16, s6, s74")); e(salu("s_addc_u32 s17, s7, 0"))
    e(salu("s_add_u32 s12, s4, s73")); e(salu("s_addc_u32 s13, s5, 0"))
    for o_ in kdma(0) + kdma(1): e(o_)
    for o_ in qld(0): e(o_)
    do_stamp('qiss')
    e(salu("s_add_u32 s20, s8, s74")); e(salu("s_addc_u32 s21, s9, 0"))
    e(salu(f"s_mov_b32 s22, 131072")); e(salu(f"s_mov_b32 s23, 0x20000"))
    e(salu(f"s_add_u32 {rname(sMV)}, {rname(sMK)}, {VBASE}", wr=[sMV]))
    lr, lc = V(117), V(118)
    e(valu("v_bfe_u32", lr, lane, "2", "2"))
    e(valu("v_and_b32", lc, "3", lane))
    e(valu("v_xor_b32", vVd, lr, tB))
    e(valu("v_lshl_add_u32", vVd, vVd, "6", tC))
    e(valu("v_lshl_add_u32", vVd, lc, "4", vVd))
    for o_ in vdma(0): e(o_)
    if pfcode:
        E.raw(op("s_getpc_b64 s[28:29]", 'salu'))
        E.label("Lpc")
        e(salu("s_mov_b32 s30, Lcode_end-Lpc")); e(salu("s_mov_b32 s31, 0x20000"))
        e(salu("s_lshl_b32 s75, s71, 13")); e(salu(f"s_add_u32 s75, s75, {rname(sMK)}", rd=[sMK], wr=[S(75)]))
        e(bload(DUM, vLin, sC, S(75), 0)); e(bload(DUM + 4, vLin, sC, S(75), 1024))
    for s in range(2, pre_kv + 1):
        for o_ in kdma(s): e(o_)
        for o_ in vdma(s - 1): e(o_)
    e(salu("s_add_u32 s24, s10, s73")); e(salu("s_addc_u32 s25, s11, 0"))
    e(salu(f"s_mov_b32 s26, 98304")); e(salu(f"s_mov_b32 s27, 0x20000"))
    c = math.log2(math.e) / math.sqrt(128.0)
    e(salu(f"s_mov_b32 {rname(sScale)}, {f32bits(c):#x}", wr=[sScale]))
    e(salu(f"s_mov_b32 {rname(sMask)}, 0xffff0000", wr=[sMask]))
    for k in range(max(pre_kv, 1) + 1, 16): tileoff(k)
    for t in (1, 2):
        e(salu(f"s_add_u32 {rname(sQo[t][0])}, {rname(sQo[0][0])}, {t*32768}", wr=[sQo[t][0]]))
        e(salu(f"s_add_u32 {rname(sQo[t][1])}, {rname(sQo[0][0])}, {t*32768+4096}", wr=[sQo[t][1]]))
    e(salu(f"s_mul_i32 s76, {rname(sW)}, {STGW}", rd=[sW], wr=[S(76)]))
    e(salu(f"s_add_u32 s76, s76, {STG}", wr=[S(76)]))
    e(salu(f"s_mov_b32 s77, 272", wr=[S(77)]))
    h, r31, l15 = V(119), V(120), V(121)
    e(valu("v_lshrrev_b32", h, "5", lane))
    e(valu("v_and_b32", r31, "31", lane))
    e(valu("v_and_b32", l15, "15", lane))
    e(valu("v_mul_u32_u24", vRow, S(77), tB))
    e(valu("v_lshl_add_u32", vRow, l15, "4", vRow))
    e(valu("v_add_u32", vRow, S(76), vRow))
    e(valu("v_mul_u32_u24", vFo, S(77), r31))
    e(valu("v_add_u32", vFo, S(76), vFo))
    e(valu("v_lshl_add_u32", vFq, h, "4", vFo))
    e(valu("v_lshl_add_u32", vFo, h, "3", vFo))
    e(valu("v_xor_b32", KR[0], h, l15))
    e(valu("v_lshlrev_b32", KR[0], "4", KR[0]))
    e(valu("v_lshl_add_u32", KR[0], r31, "8", KR[0]))
    for ks in range(1, 8): e(valu("v_xor_b32", KR[ks], str(ks * 32), KR[0]))
    e(valu("v_lshl_add_u32", VR[0], h, "2", lr))
    e(valu("v_lshlrev_b32", VR[0], "8", VR[0]))
    e(valu("v_lshl_add_u32", VR[0], lr, "6", VR[0]))
    e(valu("v_and_b32", tC, "1", tB))
    e(valu("v_lshl_add_u32", VR[0], tC, "5", VR[0]))
    e(valu("v_lshl_add_u32", VR[0], lc, "3", VR[0]))
    e(valu("v_add_u32", VR[0], str(VBASE), VR[0]))
    for dt in range(1, 4): e(valu("v_xor_b32", VR[dt], str(dt * 64), VR[0]))
    for t in range(3): e(valu("v_mov_b32", L[t], "0"))
    do_stamp('pro')
    for o_ in prescale_ops(0): e(o_)
    do_stamp('presc')
    E.wait_for(Kd[0] + Kd[1])
    b = op("s_barrier", 'bar'); E.raw(b); bars[0] = b
    q0 = qfrag_reads(0)
    Kreads[0] = [kread(0, ks) for ks in range(8)]
    for ks in range(8): e(q0[ks]); e(Kreads[0][ks])

    heads = [0] * len(streams)
    dpos = [0]
    tmp_owner = [None]
    def avail(o_, g):
        if o_.earliest > g: return False
        for a in o_.meta.get('after', ()):
            if not a.done: return False
        ab = o_.meta.get('after_bar')
        if ab is not None and ab not in bars: return False
        return True
    def tmp_ok(k, o_):
        uses = bool((o_.rd | o_.wr) & {T0, T1, T2, T3})
        return (not uses) or tmp_owner[0] in (None, k)
    def after_emit(k, o_):
        uses = bool((o_.rd | o_.wr) & {T0, T1, T2, T3})
        if not uses: return
        if not (o_.wr & {T0, T1, T2, T3}): tmp_owner[0] = None
        else: tmp_owner[0] = k
    MEMK = ('ds_r', 'ds_w', 'vm_ld', 'vm_dma', 'vm_st')
    def pick(g, mem, room=1000):
        best = None; bk = None
        for k, st in enumerate(streams):
            if heads[k] >= len(st): continue
            o_ = st[heads[k]]
            if (o_.kind in MEMK) != mem: continue
            if o_.cost > room: continue
            if not avail(o_, g) or not tmp_ok(k, o_) or not E.ready(o_): continue
            key = (o_.deadline, getattr(o_, 'due', 0))
            if best is None or key < bk: best = k; bk = key
        return best
    def force(g):
        c = 0
        while True:
            cand = [k for k, st in enumerate(streams) if heads[k] < len(st) and st[heads[k]].deadline <= g]
            if not cand: return c
            ok = [k for k in cand if avail(streams[k][heads[k]], g) and tmp_ok(k, streams[k][heads[k]])]
            if not ok:
                ko = tmp_owner[0]; assert ko is not None, [streams[k][heads[k]] for k in cand]
                ok = [ko]
            rdy = [k for k in ok if E.ready(streams[k][heads[k]])]
            k = min(rdy or ok, key=lambda k: (streams[k][heads[k]].deadline, getattr(streams[k][heads[k]], 'due', 0)))
            o_ = streams[k][heads[k]]
            c += E.emit(o_); heads[k] += 1; after_emit(k, o_)
    over = 0; gapcost = []
    stamp_gaps = set()
    if stamp:
        stamp_gaps = {qk0(first_of_step[x]) for x in stamp if isinstance(x, int)}
    carry = 0
    for g in range(768):
        carry += force(g)
        n0 = len(E.out)
        carry += E.emit(M[g]) - 8
        if g: gapcost.append(carry)
        if g == 0: do_stamp('m0')
        used = 0
        for o_ in pinned[g]: used += E.emit(o_)
        nm = len(pinned[g])
        lim = 5 if g < 10 else 2
        while dpos[0] < len(dma) and nm < lim and used + 4 <= budget:
            o_ = dma[dpos[0]]
            if o_.kind == 'salu':
                if g >= 10 or not avail(o_, g): break
                used += E.emit(o_); dpos[0] += 1; continue
            used += E.emit(o_); dpos[0] += 1; nm += 1
        while nm < 2 and used + 4 <= budget:
            k = pick(g, True, budget - used)
            if k is None: break
            o_ = streams[k][heads[k]]; used += E.emit(o_); heads[k] += 1; nm += 1
        for f in post[g]: used += f()
        if g in stamp_gaps: stamp.add('gap'); do_stamp('gap')
        if dpos[0] < len(dma) and dma[dpos[0]].kind == 'salu' and avail(dma[dpos[0]], g):
            used += E.emit(dma[dpos[0]]); dpos[0] += 1
        while True:
            k = pick(g, False, budget - used)
            if k is None: break
            o_ = streams[k][heads[k]]
            used += E.emit(o_); heads[k] += 1; after_emit(k, o_)
        carry = used
    assert dpos[0] == len(dma), (dpos[0], len(dma))
    do_stamp('mend')
    while any(heads[k] < len(st) for k, st in enumerate(streams)):
        k = pick(10 ** 6, True)
        if k is None: k = pick(10 ** 6, False)
        if k is None:
            k = [k for k, st in enumerate(streams) if heads[k] < len(st) and avail(st[heads[k]], 10 ** 6)][0]
        o_ = streams[k][heads[k]]; E.emit(o_); heads[k] += 1; after_emit(k, o_)
    do_stamp('epi')
    est = sum(max(32, 8 + c) for c in gapcost)
    sys.stderr.write(f"gaps over budget: {sum(1 for c in gapcost if c > 24)}  est main cycles {est}  nops {E.nnop} instrs {len(E.out)}\n")

    e(salu(f"s_or_b64 s[70:71], {rname(sFl[0],2)}, {rname(sFl[1],2)}", rd=rng(sFl[0], 4)))
    e(salu(f"s_or_b64 s[70:71], s[70:71], {rname(sFl[2],2)}", rd=rng(sFl[2], 2)))
    if slow: e(salu("s_cbranch_scc1 Lslow"))
    if stamp:
        E.raw(op("s_waitcnt vmcnt(0)", 'wait')); E.vm = []
        do_stamp('drain')
        e(salu("s_mov_b32 s70, s78")); e(salu("s_mov_b32 s71, s79")); e(salu("s_mov_b32 s72, 0x100000")); e(salu("s_mov_b32 s73, 0x20000"))
        e(salu(f"s_lshl_b32 s74, s2, 2")); e(salu(f"s_add_u32 s74, s74, {rname(sW)}")); e(salu("s_lshl_b32 s74, s74, 6"))
        e(valu("v_mov_b32", V(40), S(74)))
        e(valu("v_mov_b32", V(41), S(100)))
        E.raw(op("buffer_store_dword v41, v40, s[68:71], 0 offen".replace("s[68:71]", "s[70:73]"), 'vm_st', rd=[V(40), V(41)])) if False else None
        for k in range(nstamp[0] + 1):
            src = S(100) if k == 0 else S(80 + 2 * (k - 1))
            e(valu("v_mov_b32", V(42 + k), src))
        e(salu("s_mov_b32 s68, s78")); e(salu("s_mov_b32 s69, s79")); e(salu("s_mov_b32 s70, 0x100000")); e(salu("s_mov_b32 s71, 0x20000"))
        for k in range(nstamp[0] + 1):
            E.raw(op(f"buffer_store_dword v{42+k}, v40, s[68:71], 0 offen offset:{4*k}", 'vm_st', rd=[V(40), V(42 + k)]))
    E.label("Lend")
    E.raw(op("s_endpgm", 'end'))

    if slow:
        def fence():
            E.raw(op("s_waitcnt vmcnt(0) lgkmcnt(0)", 'wait')); E.vm = []; E.lgkm = []
            E.nop(16)
        E.label("Lslow")
        fence()
        sTl, sSo0, sSo1, sJ, sJ2 = S(72), S(73), S(74), S(75), S(37)
        vKg, vVs = V(113), V(114)
        SVR = [V(8 + i) for i in range(4)]
        lane = V(115)
        e(valu("v_lshrrev_b32", lane, "4", vLin))
        e(valu("v_and_b32", vKg, "31", lane)); e(valu("v_lshlrev_b32", vKg, "8", vKg))
        e(valu("v_lshrrev_b32", lane, "5", lane)); e(valu("v_lshl_add_u32", vKg, lane, "4", vKg))
        e(valu("v_subrev_u32", vVs, sMK, vVd))
        e(salu(f"s_sub_u32 s77, s76, {VBASE}", wr=[S(77)]))
        for dt in range(4): e(valu("v_add_u32", SVR[dt], S(77), VR[dt]))
        e(salu(f"s_mov_b32 {rname(sTl)}, 0", wr=[sTl]))
        E.label("Lslow_tile")
        e(salu(f"s_cmp_eq_u64 {rname(sFl[0],2)}, 0"))
        e(salu("s_cbranch_scc1 Lslow_next"))
        e(salu(f"s_lshl_b32 {rname(sSo0)}, {rname(sTl)}, 15", wr=[sSo0]))
        e(salu(f"s_add_u32 {rname(sSo0)}, {rname(sSo0)}, {rname(sQo[0][0])}", wr=[sSo0]))
        e(salu(f"s_add_u32 {rname(sSo1)}, {rname(sSo0)}, 4096", wr=[sSo1]))
        for i in range(8): e(bload(LAND[1] + 4 * i, vLin, sQ, (sSo0, sSo1)[i // 4], (i % 4) * 1024))
        for o_ in prescale_ops(1): e(o_)
        for ks in range(8): e(ds_read128(QF[0] + 4 * ks, vFq, ks * 32))
        e(valu("v_mov_b32", T2, "0xff800000"))
        e(salu(f"s_mov_b32 {rname(sJ)}, 0", wr=[sJ]))
        fence()
        sb = SB[0]
        E.label("Lslow_p1")
        for ks in range(8): e(bload(KF + 4 * ks, vKg, sK, sJ, ks * 32))
        for ks in range(8): e(mfma(sb, KF + 4 * ks, QF[0] + 4 * ks, sb if ks else None))
        for r in range(0, 16, 2): e(valu("v_max3_f32", T2, T2, sb + r, sb + r + 1))
        e(salu(f"s_add_u32 {rname(sJ)}, {rname(sJ)}, 8192", wr=[sJ]))
        fence()
        e(salu(f"s_cmp_lt_u32 {rname(sJ)}, 131072")); e(salu("s_cbranch_scc1 Lslow_p1"))
        e(valu("v_mov_b32", T1, T2))
        e(op(f"v_permlane32_swap_b32 {rname(T2)}, {rname(T1)}", 'perm', rd=[T2, T1], wr=[T2, T1]))
        e(valu("v_max_f32", T2, T2, T1))
        e(valu("v_sub_f32", T2, "0", T2))
        for r in range(16): e(valu("v_mov_b32", NEG[0] + r, T2))
        for r in range(64): e(valu("v_mov_b32", O[2] + r, "0"))
        e(valu("v_mov_b32", L[2], "0"))
        e(salu(f"s_mov_b32 {rname(sJ)}, 0", wr=[sJ]))
        fence()
        E.label("Lslow_p2")
        e(salu(f"s_add_u32 {rname(sJ2)}, {rname(sJ)}, 4096", wr=[sJ2]))
        for ks in range(8): e(bload(KF + 4 * ks, vKg, sK, sJ, ks * 32))
        for hh in range(2):
            e(salu(f"s_add_u32 m0, s76, {hh*4096}", wr=[M0]))
            for i in range(4): e(bdma(vVs, sV, (sJ, sJ2)[hh], i * 1024))
        fence()
        for kk in range(2):
            for dt in range(4):
                for j in range(2): e(ds_readtr(VF + 4 * (4 * kk + dt) + 2 * j, SVR[dt], (kk * 16 + j * 8) * 256))
        for ks in range(8): e(mfma(sb, KF + 4 * ks, QF[0] + 4 * ks, sb if ks else NEG[0]))
        for j in range(8):
            a, b = sb + 2 * j, sb + 2 * j + 1
            for o_ in [valu("v_exp_f32", a, a, kind='trans'), valu("v_exp_f32", b, b, kind='trans'),
                       valu("v_add_f32", L[2], a, L[2]), valu("v_add_f32", L[2], b, L[2]),
                       valu("v_cvt_pk_bf16_f32", sb + (j if j < 4 else 4 + j), a, b)]: e(o_)
        for kk in range(2):
            for dt in range(4): e(mfma(O[2] + 16 * dt, VF + 4 * (4 * kk + dt), sb + 8 * kk, O[2] + 16 * dt))
        e(salu(f"s_add_u32 {rname(sJ)}, {rname(sJ)}, 8192", wr=[sJ]))
        fence()
        e(salu(f"s_cmp_lt_u32 {rname(sJ)}, 131072")); e(salu("s_cbranch_scc1 Lslow_p2"))
        for o_ in epilogue_ops(2, None): e(o_)
        for o_ in epilogue_body(2, (sSo0, sSo1))[0]: e(o_)
        fence()
        E.label("Lslow_next")
        e(salu(f"s_mov_b64 {rname(sFl[0],2)}, {rname(sFl[1],2)}"))
        e(salu(f"s_mov_b64 {rname(sFl[1],2)}, {rname(sFl[2],2)}"))
        e(salu(f"s_add_u32 {rname(sTl)}, {rname(sTl)}, 1", wr=[sTl]))
        e(salu(f"s_cmp_lt_u32 {rname(sTl)}, 3")); e(salu("s_cbranch_scc1 Lslow_tile"))
        E.raw(op("s_endpgm", 'end'))

    def drop(i):
        if 'nobar' in dbg and i.kind == 'bar': return True
        if 'nodma' in dbg and i.kind == 'vm_dma': return True
        if 'novmw' in dbg and i.kind == 'wait' and 'vmcnt' in i.text and 'lgkm' not in i.text: return True
        if 'nods' in dbg and i.kind == 'ds_r': return True
        if 'noexp' in dbg and i.kind == 'trans': return True
        if 'noadd' in dbg and i.text.startswith('v_add_f32'): return True
        if 'nocvt' in dbg and i.text.startswith('v_cvt_pk'): return True
        return False
    E.out = [i for i in E.out if not drop(i)]
    hdr = open("cdna_kernels/" + NAME + ".s.ref").read().split("\n")
    top = [l for l in hdr if l.startswith(";") and "@launch" not in l and not l.startswith("; Override") and not l.startswith("; grid=")]
    txt = "\n".join(top) + f"\n; @launch grid=(256,1,1) block=(256,1,1) lds={LDS}\n"
    txt += f""".amdgcn_target "amdgcn-amd-amdhsa--gfx950"
.text
.globl {NAME}_kernel
.p2align 8
.type {NAME}_kernel,@function
{NAME}_kernel:
""" + E.text() + f"""Lcode_end:
.section .rodata,"a"
.p2align 6
.amdhsa_kernel {NAME}_kernel
  .amdhsa_next_free_vgpr 512
  .amdhsa_next_free_sgpr 102
  .amdhsa_accum_offset 256
  .amdhsa_group_segment_fixed_size 0
  .amdhsa_kernarg_size 48
  .amdhsa_user_sgpr_count 2
  .amdhsa_user_sgpr_kernarg_segment_ptr 1
  .amdhsa_system_sgpr_workgroup_id_x 1
.end_amdhsa_kernel
"""
    return txt, LDS

META = """
.amdgpu_metadata
---
amdhsa.version: [1, 2]
amdhsa.kernels:
  - .name: {n}
    .symbol: {n}.kd
    .kernarg_segment_size: 48
    .kernarg_segment_align: 8
    .group_segment_fixed_size: 0
    .private_segment_fixed_size: 0
    .wavefront_size: 64
    .sgpr_count: 102
    .vgpr_count: 512
    .max_flat_workgroup_size: 256
    .args:
      - {{.name: kernargs, .size: 48, .offset: 0, .value_kind: by_value}}
...
.end_amdgpu_metadata
"""
def write(name, **kw):
    import subprocess
    txt, lds = build(**kw)
    open(name + ".s", "w").write(txt)
    open(name + ".full.s", "w").write(txt + META.format(n=NAME + "_kernel"))
    r = subprocess.run(["clang", "-x", "assembler", "-target", "amdgcn-amd-amdhsa", "-mcpu=gfx950", name + ".full.s", "-o", name + ".co"], capture_output=True, text=True)
    if r.returncode: print(r.stderr[:3000]); sys.exit(1)
    return lds

if __name__ == "__main__":
    lds = write("k1")
    print("lds", lds)
```

```python
import sys, math, struct
from asmlib import *

NAME = "standalone__gqa_softmax__near_ridge"
def f32bits(x): return struct.unpack("<I", struct.pack("<f", x))[0]

def build(d=(0, 0, 4, 4, 8, 8), RK=6, RV=5, lag=2, stamp=None, qpos=None, pre_kv=1, budget=8, st_flags=" nt", ld_flags=" nt",
          q_flags=" nt", pfcode=True, slow=True, thr_log2=30, rot=0, dbg=(), plead=70, bar_every=1, vlast=False, urg=2, espan=100, pro_dma=2, spread=True, qmix=2, maxout=10, dgap=4, mode='cccccc', pk=False, ksmaj=False, earlybar=False, sfine=None, qlead=None, tlb=''):
    E = Emitter()
    NT = 6
    vLin, vK0, vK1, vV0, vV1, vRow, vFq, vFo = [V(i) for i in range(1, 9)]
    KR = [V(9 + i) for i in range(4)]
    VR = [V(13 + i) for i in range(8)]
    T0, T1, T2, T3 = V(22), V(23), V(24), V(25)
    ET = V(28)
    NB = lag + 1
    SB = [V(36 + 8 * i) for i in range(4)]
    NEG = [V(68 + 4 * j) for j in range(NT)]
    RC = [NEG[j] + 1 for j in range(NT)]
    vQd = [V(60 + i) for i in range(4)]
    vQr = [V(64 + i) for i in range(4)]
    assert NB <= 3
    O = [A(0)] + [V(96 + 32 * j) for j in range(5)]
    QF = [A(32 + 16 * j) for j in range(NT)]
    KF, VF = A(128), A(160)
    LACC = [A(192 + 4 * j) for j in range(NT)]
    ONES = A(216)
    DUM = A(220)
    LAND = [O[5] + 16] + [O[j] for j in range(1, 6)]
    sQ, sK, sV, sO, sC = S(12), S(16), S(20), S(24), S(28)
    sW, sMK, sMV, sScale, sMask = S(32), S(33), S(34), S(35), S(36)
    sT = [S(40 + i) for i in range(16)]
    sQo = [S(56 + j) for j in range(NT)]
    sFl = [S(62 + 2 * j) for j in range(NT)]
    sStg = S(39); sNScale = S(37)
    KBASE, VBASE = 0, RK * 8192
    STG = VBASE + RV * 8192
    STGW, STGH = 16896, 4352
    SLOT = [0, 4352, 8704, 12800]
    LDS = STG + 4 * STGW
    assert RK * 8192 <= 65536 and LDS <= 163840
    nstamp = [0]
    def do_stamp(name='x'):
        if not stamp or name not in stamp: return
        k = nstamp[0]; nstamp[0] += 1
        if 'both' in stamp:
            E.raw(op(f"s_memtime s[{80+2*k}:{81+2*k}]", 'smem')); k += 1; nstamp[0] += 1
        assert k < 10
        E.raw(op(f"{'s_memtime' if 'cyc' in stamp else 's_memrealtime'} s[{80+2*k}:{81+2*k}]", 'smem'))
        E.raw(op("s_waitcnt lgkmcnt(0)", 'wait')); E.lgkm = []

    NS = max(d) + 16
    U = [(s, t) for s in range(NS) for t in range(NT) if d[t] <= s < d[t] + 16]
    NU = len(U); assert NU == 96
    qk0 = {}; pv0 = {}; pos = 0
    for i in range(lag): qk0[i] = pos; pos += 8
    for i in range(NU):
        if i + lag < NU: qk0[i + lag] = pos; pos += 8
        pv0[i] = pos; pos += 9
    NM = pos
    first_of_step = {}; last_of_step = {}; first_of_tile = {}; last_of_tile = {}
    for i, (s, t) in enumerate(U):
        first_of_step.setdefault(s, i); last_of_step[s] = i
        first_of_tile.setdefault(t, i); last_of_tile[t] = i
    def cinit(i):
        f = first_of_tile[U[i][1]]
        return mode[U[i][1]] == 'c' and i > f and qk0[i] - (qk0[f] + 8) >= 14
    M = [None] * NM
    for i, (s, t) in enumerate(U):
        sb = SB[i % NB]
        for kt in range(2):
            for ks in range(4):
                c = sb + 4 * kt if ks else (NEG[t] if cinit(i) else None)
                M[qk0[i] + (2 * ks + kt if ksmaj else 4 * kt + ks)] = mfma16(sb + 4 * kt, KF + 4 * (4 * kt + ks), QF[t] + 4 * ks, c)
        fst = i == first_of_tile[t]
        M[pv0[i]] = mfma16(LACC[t], ONES, sb, None if fst else LACC[t])
        for dt in range(8):
            o = O[t] + 4 * dt
            M[pv0[i] + 1 + dt] = mfma16(o, VF + 4 * dt, sb, None if fst else o)
    assert all(m is not None for m in M)

    korder = [4 * (n % 2) + n // 2 for n in range(8)] if ksmaj else list(range(8))
    def kread(s, f): return ds_read128(KF + 4 * f, KR[f % 4], KBASE + (s % RK) * 8192 + (f // 4) * 4096)
    def vread(s, dt, j): return ds_readtr(VF + 4 * dt + 2 * j, VR[dt], (s % RV) * 8192 + j * 4096)
    pinned = [[] for _ in range(NM)]
    post = [[] for _ in range(NM)]
    Kreads = {}; Vreads = {}; posr = {}; posw = {}
    lastr = {}
    for s in range(1, NS):
        i = last_of_step[s - 1]
        Kreads[s] = [kread(s, f) for f in korder]
        wide = spread and qk0[first_of_step[s]] - qk0[i] >= 17
        for f in range(8): pinned[qk0[i] + (2 * f if wide else f)].append(Kreads[s][f])
        posr['K', s] = qk0[i]; lastr['K', s] = qk0[i] + (14 if wide else 7)
        Vreads[s] = []
        wide = spread and pv0[first_of_step[s]] - pv0[i] >= 17
        for dt in range(8):
            for j in range(2):
                r = vread(s, dt, j); Vreads[s].append(r); pinned[pv0[i] + 1 + (2 * dt + j if wide else dt)].append(r)
        posr['V', s] = pv0[i] + 1; lastr['V', s] = pv0[i] + 1 + (15 if wide else 7)
    Vreads[0] = []
    v0pos = pv0[0] - 10
    for dt in range(8):
        for j in range(2):
            r = vread(0, dt, j); Vreads[0].append(r); pinned[v0pos + dt].append(r)
    posr['V', 0] = v0pos; lastr['V', 0] = v0pos + 7
    def addwait(key, rds, g):
        h = len(rds) // 2
        if lastr[key] + 3 <= g - 1:
            posw[key] = g - 1; post[g - 1].append(lambda: E.wait_for(rds))
        elif lastr[key] + 3 <= g + 3:
            post[g - 1].append(lambda: E.wait_for(rds[:h]))
            posw[key] = g + 3; post[g + 3].append(lambda: E.wait_for(rds))
        else: posw[key] = g + 7
    for s in range(NS):
        if s >= 1: addwait(('K', s), Kreads[s], qk0[first_of_step[s]])
        else: posw['K', 0] = 7
        addwait(('V', s), Vreads[s], pv0[first_of_step[s]] + 1)
    bpos = [-1]
    if sfine is None:
        cand = sorted({qk0[first_of_step[s]] - 1 for s in range(1, NS) if s % bar_every == 0 or s <= 2} | {v0pos - 1})
    else:
        cand = set()
        for (kind, s), p_ in posr.items():
            if s <= sfine or (kind == 'K' and ((s - sfine) % bar_every == 0 or s > 16)): cand.add(p_ - 1)
        if ('K', NS) not in posr and NS - 1 > sfine: pass
        cand = sorted(c_ for c_ in cand if c_ >= 0)
    bpos += cand
    need_at = {b: [] for b in range(len(bpos))}
    need_at[0].append(('K', 0))
    for key, p in posr.items():
        b = max(k for k in range(len(bpos)) if bpos[k] < p)
        need_at[b].append(key)
    def release(key):
        return min(k for k in range(len(bpos)) if bpos[k] >= posw[key])

    bars = {}
    Kd = {}; Vd = {}; Qd = {}
    def kdma(s):
        ops = [salu(f"s_add_u32 m0, {rname(sMK)}, {(s % RK) * 8192}", rd=[sMK], wr=[M0]),
               bdma(vK0, sK, sT[s % 16], 0, ld_flags), bdma(vK1, sK, sT[s % 16], 1024, ld_flags)]
        if s >= RK: ops[0].meta['after_bar'] = release(('K', s - RK))
        Kd[s] = ops[1:]; return ops
    def vdma(s):
        ops = [salu(f"s_add_u32 m0, {rname(sMV)}, {(s % RV) * 8192}", rd=[sMV], wr=[M0]),
               bdma(vV0, sV, sT[s % 16], 0, ld_flags), bdma(vV1, sV, sT[s % 16], 1024, ld_flags)]
        if s >= RV: ops[0].meta['after_bar'] = release(('V', s - RV))
        Vd[s] = ops[1:]; return ops
    qhalf = {}
    def qld(t):
        if mode[t] == 'f':
            ops = [salu(f"s_add_u32 m0, {rname(sStg)}, {SLOT[qhalf[t]]}", rd=[sStg], wr=[M0])]
            ops += [bdma(vQd[i], sQ, sQo[t], i * 1024, q_flags) for i in range(4)]
            Qd[t] = ops; return [ops]
        ops = [bload(LAND[t] + 4 * i, vLin, sQ, sQo[t], i * 1024, q_flags) for i in range(4)]
        Qd[t] = ops; return [[o_] for o_ in ops]
    early = [t for t in range(NT) if d[t] == 0 and mode[t] == 'c']
    late = [t for t in range(NT) if t not in early]
    pro_f = [t for t in late if d[t] == 0]
    users = []
    for t in late: users.append((qk0[first_of_tile[t]] - 30, 'q', t))
    for t in range(NT): users.append((pv0[last_of_tile[t]] + 1, 'o', t))
    users.sort()
    nearly = len(early)
    for k, t in enumerate(early): qhalf[t] = k % 2
    uhalf = {}; nf = 0; nh = nearly
    for k, (_, kind, t) in enumerate(users):
        if kind == 'q' and mode[t] == 'f': uhalf[k] = (2 + nf) % 4; nf += 1
        else: uhalf[k] = nh % 2; nh += 1
        if kind == 'q': qhalf[t] = uhalf[k]
    if qpos is None: qpos = [max(1, d[t] - 2) for t in range(NT)]
    order = sorted([(posr[k], k) for k in posr])
    dma = []
    placed = set(); qq = []
    if qlead is not None:
        ql = qlead if isinstance(qlead, (list, tuple)) else [qlead] * NT
        order = sorted(order + [(qk0[first_of_tile[t]] - ql[t], ('Q', t)) for t in late])
    for p, (kind, s) in order:
        if kind == 'Q':
            grps = qld(s)
            if s not in pro_f:
                for grp in grps: dma += grp
            placed.add(s); continue
        if kind == 'V' and qlead is None:
            for t in late:
                if qpos[t] <= s and t not in placed: qq += qld(t); placed.add(t)
        if not ((kind == 'K' and s <= pre_kv) or (kind == 'V' and s < pre_kv)):
            dma += kdma(s) if kind == 'K' else vdma(s)
        nq = 0
        while qq and nq < qmix:
            grp = qq.pop(0); dma += grp; nq += len(grp)
    assert placed == set(late) and not qq

    streams = []
    def prescale_ops(t, half, packed=False):
        ops = []
        for i in range(4):
            for j in range(4):
                x = LAND[t] + 4 * i + j
                a, b = (T0, T1) if j % 2 == 0 else (T2, T3)
                ops.append(valu("v_lshlrev_b32", a, "16", x, may_wait=True))
                ops.append(valu("v_and_b32", b, sMask, x))
                if packed:
                    ops.append(op(f"v_pk_mul_f32 {rname(a,2)}, {rname(a,2)}, {rname(sMV - 0,2)} op_sel:[0,1] op_sel_hi:[1,1]", 'valu', rd=[a, b, sScale], wr=[a, b]))
                else:
                    ops.append(valu("v_mul_f32", a, sScale, a))
                    ops.append(valu("v_mul_f32", b, sScale, b))
                ops.append(valu("v_cvt_pk_bf16_f32", x, a, b))
                if j % 2: ops.append(ds_write64(vRow, x - 1, half * STGH + i * 1088 + (j - 1) * 4))
        return ops
    def qfrag_reads(t, half, dst=None): return [ds_read128((dst or QF[t]) + 4 * ks, vFq, half * STGH + ks * 64) for ks in range(4)]
    def swap(kind, a, b): return op(f"v_permlane{kind}_swap_b32 {rname(a)}, {rname(b)}", 'perm', rd=[a, b], wr=[a, b])
    def rowmax_finish(x, y):
        return [valu("v_mov_b32", y, x), swap(32, x, y), valu("v_max_f32", x, x, y),
                valu("v_mov_b32", y, x), swap(16, x, y), valu("v_max_f32", x, x, y)]

    for i, (s, t) in enumerate(U):
        sb = SB[i % NB]; ops = []
        fst = i == first_of_tile[t]
        dl = pv0[i]
        if fst:
            ops = [valu("v_max3_f32", T0, sb, sb + 1, sb + 2), valu("v_max3_f32", T1, sb + 3, sb + 4, sb + 5),
                   valu("v_max3_f32", T0, T0, sb + 6, sb + 7), valu("v_max_f32", T0, T0, T1)] + rowmax_finish(T0, T1)
            if mode[t] == 'f':
                ops.append(valu("v_mul_f32", NEG[t], sNScale, T0))
                for k_, o_ in enumerate(ops): o_.deadline = dl; o_.earliest = qk0[i] + 7; o_.due = -1
                negdone = ops[-1]
            else:
                ops.append(valu("v_sub_f32", NEG[t], "0", T0))
                nxt = [k for k in range(i + 1, NU) if U[k][1] == t and cinit(k)][0]
                for k_, o_ in enumerate(ops): o_.deadline = min(dl, qk0[nxt] - 1); o_.earliest = qk0[i] + 7; o_.due = -1
                negdone = ops[-1]
                mv = [valu("v_mov_b32", NEG[t] + r, NEG[t], deadline=qk0[nxt] - 1, after=[negdone]) for r in range(1, 4)]
                streams.append(mv)
            build.neg = getattr(build, 'neg', {}); build.neg[t] = negdone
        Es = []; Fs = []
        for j in range(4):
            a, b = sb + 2 * j, sb + 2 * j + 1
            grp = []
            if mode[t] == 'f':
                grp += [valu("v_fma_f32", a, a, sScale, NEG[t], after=[build.neg[t]]), valu("v_fma_f32", b, b, sScale, NEG[t])]
            elif not cinit(i):
                grp += [valu("v_add_f32", a, NEG[t], a, after=[build.neg[t]]), valu("v_add_f32", b, NEG[t], b)]
            ea, eb = valu("v_exp_f32", a, a, kind='trans'), valu("v_exp_f32", b, b, kind='trans')
            grp += [ea, eb]
            for k_, o_ in enumerate(grp):
                o_.deadline = dl; o_.due = 2 * j + 0.01 * k_; o_.earliest = qk0[i] + ((6 if ksmaj else 3) if j < 2 else 7)
            Es += grp
            cv = valu("v_cvt_pk_bf16_f32", sb + j, a, b, after=[ea, eb]); cv.deadline = dl; cv.due = 2 * j + 1.5
            Fs.append(cv)
        streams.append(ops + Es); streams.append(Fs)

    def epilogue_head(t, l, rc):
        thr = f32bits(2.0 ** thr_log2)
        return [valu("v_accvgpr_read_b32", l, LACC[t]), valu("v_rcp_f32", rc, l, kind='trans')], \
               [op(f"v_cmp_nge_f32 vcc, {thr:#x}, {rname(l)}", 'valu', rd=[l], wr=[VCC]),
                salu(f"s_mov_b64 {rname(sFl[t],2)}, vcc", rd=[VCC], wr=rng(sFl[t], 2))]
    def epilogue_body(o, rc, soff, half, early_=None, packed=False):
        ops = []; wr = []
        for dt in range(8):
            src = o + 4 * dt
            grp = []
            if src >= 256:
                x = ET + 4 * (dt % 2)
                for r in range(4): grp.append(valu("v_accvgpr_read_b32", x + r, src + r))
            else: x = src
            if packed:
                for r in (0, 2): grp.append(op(f"v_pk_mul_f32 {rname(x+r,2)}, {rname(x+r,2)}, {rname(rc-1,2)} op_sel:[0,1] op_sel_hi:[1,1]", 'valu', rd=[x+r, x+r+1, rc], wr=[x+r, x+r+1]))
            else:
                for r in range(4): grp.append(valu("v_mul_f32", x + r, rc, x + r))
            grp.append(valu("v_cvt_pk_bf16_f32", x, x, x + 1))
            grp.append(valu("v_cvt_pk_bf16_f32", x + 1, x + 2, x + 3))
            w = ds_write64(vFo, x, half * STGH + dt * 32); grp.append(w); wr.append(w)
            if early_ is not None:
                for o_ in grp: o_.earliest = early_ + dt
            ops += grp
        rds = [ds_read128(o + 4 * i, vRow, half * STGH + i * 1088) for i in range(4)]
        sts = [bstore(o + 4 * i, vLin, sO, soff, i * 1024, st_flags, may_wait=True) for i in range(4)]
        return ops + rds + sts, wr, rds

    lastrd = {}
    for k, (_, kind, t) in enumerate(users):
        half = uhalf[k]
        if kind == 'q' and mode[t] == 'f':
            rd = [ds_read128(QF[t] + 4 * ks, vQr[ks], SLOT[half]) for ks in range(4)]
            dl = max(0, qk0[first_of_tile[t]] - 4)
            w = Ins("(wait q)", 'qwait', cost=4); w.qops = Qd[t][1:]; w.meta['after'] = [Qd[t][-1]]
            for o_ in [w] + rd: o_.deadline = dl; o_.earliest = dl - 6
            firstw = Qd[t][0]; lr = rd[-1]
            streams.append([w] + rd)
        elif kind == 'q':
            ops = prescale_ops(t, half); rd = qfrag_reads(t, half)
            dl = qk0[first_of_tile[t]] - 4
            pl = plead[t] if isinstance(plead, (list, tuple)) else plead
            for o_ in ops + rd: o_.deadline = dl; o_.earliest = dl - pl
            ops[0].meta['after'] = [Qd[t][-1]]
            firstw = [o_ for o_ in ops if o_.kind == 'ds_w'][0]; lr = rd[-1]
            streams.append(ops + rd)
        else:
            i = last_of_tile[t]
            l = NEG[t] + 2
            h1, h2 = epilogue_head(t, l, RC[t])
            for o_ in h1 + h2: o_.earliest = pv0[i]
            b, wr, rds = epilogue_body(O[t], RC[t], sQo[t], half, early_=(NM if (pk and i == NU - 1) else pv0[i] + 1), packed=(pk and i == NU - 1))
            ops = h1 + h2 + b
            for n_, o_ in enumerate(ops):
                dl_ = pv0[i] + 14 + (n_ * espan) // len(ops)
                o_.deadline = dl_ if dl_ < NM - 1 else 100000 + k
            firstw = wr[0]; lr = rds[-1]
            streams.append(ops)
        if half in lastrd: firstw.meta.setdefault('after', []).append(lastrd[half])
        lastrd[half] = lr

    def mkbar(b):
        def f():
            ops = []
            for kind, x in need_at[b]: ops += (Kd if kind == 'K' else Vd)[x]
            c = 0
            while not all(o_.done for o_ in ops):
                assert avail(dma[dpos[0]], 10 ** 6), dma[dpos[0]]
                c += E.emit(dma[dpos[0]]); dpos[0] += 1
            c += E.wait_for(ops)
            x = op("s_barrier", 'bar'); E.raw(x); bars[b] = x
            return c + 4
        return f
    for b in range(1, len(bpos)): post[bpos[b]].append(mkbar(b))

    e = E.emit
    e(salu(f"s_cmp_ge_u32 s2, 256", rd=[S(2)]))
    e(salu("s_cbranch_scc1 Lend"))
    E.raw(op("s_load_dwordx8 s[4:11], s[0:1], 0", 'smem'))
    if stamp: E.raw(op(f"s_load_dwordx2 s[78:79], s[0:1], {32 if 'dbgbuf' in stamp else 40}", 'smem'))
    if stamp: E.raw(op(f"{'s_memtime' if 'cyc' in stamp else 's_memrealtime'} s[100:101]", 'smem'))
    if any(isinstance(x, int) for x in dbg): E.raw(op("s_memrealtime s[100:101]", 'smem'))
    lane, tA, tB, tC, l15, lr_, lc = [V(40 + i) for i in range(7)]
    e(valu("v_lshrrev_b32", tA, "6", V(0)))
    e(valu("v_and_b32", lane, "63", V(0)))
    e(op(f"v_readfirstlane_b32 {rname(sW)}, {rname(tA)}", 'rfl', rd=[tA], wr=[sW]))
    e(valu("v_lshlrev_b32", vLin, "4", lane))
    e(salu("s_and_b32 s74, s2, 7"))
    e(salu("s_lshr_b32 s75, s2, 3"))
    e(salu("s_lshl_b32 s74, s74, 3"))
    e(salu("s_lshr_b32 s76, s75, 2"))
    e(salu("s_add_u32 s74, s74, s76"))
    e(salu("s_and_b32 s75, s75, 3"))
    e(salu("s_lshl_b32 s76, s74, 2"))
    e(salu("s_add_u32 s76, s76, s75"))
    e(salu("s_mul_i32 s76, s76, 98304"))
    if rot > 0: e(salu(f"s_mul_i32 s38, s74, {rot*8192}"))
    if rot < 0: e(salu(f"s_mul_i32 s38, s75, {-rot*8192}"))
    e(salu("s_lshl_b32 s74, s74, 17"))
    e(valu("v_lshrrev_b32", tB, "4", lane))
    e(valu("v_lshl_add_u32", tC, tA, "3", tB))
    e(valu("v_and_b32", l15, "15", lane))
    e(valu("v_xor_b32", vK1, l15, tC))
    e(valu("v_and_b32", vK1, "15", vK1))
    e(valu("v_lshlrev_b32", tC, "8", tC))
    e(valu("v_lshl_add_u32", vK0, vK1, "4", tC))
    e(valu("v_xor_b32", vK1, "64", vK0))
    e(salu(f"s_lshl_b32 {rname(sMK)}, {rname(sW)}, 11", rd=[sW], wr=[sMK]))
    e(salu(f"s_lshl_b32 {rname(sQo[0])}, {rname(sW)}, 12", rd=[sW], wr=[sQo[0]]))
    for t in early + pro_f:
        if t: e(salu(f"s_add_u32 {rname(sQo[t])}, {rname(sQo[0])}, {t*16384}", wr=[sQo[t]]))
    def stg_setup():
        e(salu(f"s_mul_i32 {rname(sStg)}, {rname(sW)}, {STGW}", rd=[sW], wr=[sStg]))
        e(salu(f"s_add_u32 {rname(sStg)}, {rname(sStg)}, {STG}", wr=[sStg]))
        if 'f' in mode:
            e(valu("v_xor_b32", vQd[0], tB, l15))
            e(valu("v_lshlrev_b32", vQd[0], "4", vQd[0]))
            e(valu("v_lshl_add_u32", vQd[0], tB, "8", vQd[0]))
            for i in range(1, 4): e(valu("v_xor_b32", vQd[i], str(64 * i), vQd[0]))
    if pro_f: stg_setup()
    def tileoff(k):
        if not rot: e(salu(f"s_mov_b32 {rname(sT[k])}, {k*8192}", wr=[sT[k]]))
        else:
            e(salu(f"s_add_u32 {rname(sT[k])}, s38, {k*8192}", wr=[sT[k]]))
            e(salu(f"s_and_b32 {rname(sT[k])}, {rname(sT[k])}, 0x1ffff", wr=[sT[k]]))
    for k in range(0, pre_kv + 1): tileoff(k)
    e(salu(f"s_mov_b32 s18, 131072")); e(salu(f"s_mov_b32 s19, 0x20000"))
    e(salu(f"s_mov_b32 s14, 98304")); e(salu(f"s_mov_b32 s15, 0x20000"))
    E.raw(op("s_waitcnt lgkmcnt(0)", 'wait'))
    do_stamp('karg')
    e(salu("s_add_u32 s16, s6, s74")); e(salu("s_addc_u32 s17, s7, 0"))
    e(salu("s_add_u32 s12, s4, s76")); e(salu("s_addc_u32 s13, s5, 0"))
    pro_k = [x for kind, x in need_at[0] if kind == 'K']
    for s in sorted(pro_k):
        for o_ in kdma(s): e(o_)
    for t in sorted(early + pro_f):
        for o_ in (Qd[t] if t in pro_f else sum(qld(t), [])): e(o_)
    do_stamp('qiss')
    e(salu("s_add_u32 s20, s8, s74")); e(salu("s_addc_u32 s21, s9, 0"))
    e(salu(f"s_mov_b32 s22, 131072")); e(salu(f"s_mov_b32 s23, 0x20000"))
    e(salu(f"s_add_u32 {rname(sMV)}, {rname(sMK)}, {VBASE}", wr=[sMV]))
    e(valu("v_lshlrev_b32", vV0, "1", tB))
    e(valu("v_xor_b32", vV0, vV0, l15))
    e(valu("v_lshl_add_u32", vV0, vV0, "4", tC))
    e(valu("v_xor_b32", vV1, "128", vV0))
    for s in range(0, pre_kv + 1):
        if s not in pro_k:
            for o_ in kdma(s): e(o_)
        if s < pre_kv:
            for o_ in vdma(s): e(o_)
    if pfcode:
        E.raw(op("s_getpc_b64 s[28:29]", 'salu'))
        E.label("Lpc")
        e(salu("s_mov_b32 s30, Lcode_end-Lpc")); e(salu("s_mov_b32 s31, 0x20000"))
        e(salu("s_mul_i32 s77, s75, 12288")); e(salu(f"s_mul_i32 s75, {rname(sW)}, 3072", rd=[sW])); e(salu("s_add_u32 s77, s77, s75", wr=[S(77)]))
        for k in range(3): e(bload(DUM, vLin, sC, S(77), 1024 * k)); E.vm[-1].wr = set()
    e(salu("s_add_u32 s24, s10, s76")); e(salu("s_addc_u32 s25, s11, 0"))
    e(salu(f"s_mov_b32 s26, 98304")); e(salu(f"s_mov_b32 s27, 0x20000"))
    if tlb:
        e(valu("v_lshlrev_b32", lr_, "12", lane))
        for srd in [sV, sK, sQ] + ([sO] if tlb == 'all' else []):
            e(op(f"buffer_load_dword {rname(DUM + 4)}, {rname(lr_)}, {rname(srd,4)}, 0 offen offset:2048", 'vm_ld', rd=[lr_] + rng(srd, 4)))
    c = math.log2(math.e) / math.sqrt(128.0)
    e(salu(f"s_mov_b32 {rname(sScale)}, {f32bits(c):#x}", wr=[sScale]))
    e(salu(f"s_mov_b32 {rname(sMask)}, 0xffff0000", wr=[sMask]))
    e(salu(f"s_mov_b32 {rname(sNScale)}, {f32bits(-c):#x}", wr=[sNScale]))
    for k in range(pre_kv + 1, 16): tileoff(k)
    for t in late:
        if t not in pro_f: e(salu(f"s_add_u32 {rname(sQo[t])}, {rname(sQo[0])}, {t*16384}", wr=[sQo[t]]))
    if not pro_f: stg_setup()
    e(salu(f"s_mov_b32 s77, 272", wr=[S(77)]))
    e(valu("v_bfe_u32", lr_, lane, "2", "2"))
    e(valu("v_and_b32", lc, "3", lane))
    e(valu("v_mul_u32_u24", vRow, S(77), tB))
    e(valu("v_lshl_add_u32", vRow, l15, "4", vRow))
    e(valu("v_add_u32", vRow, sStg, vRow))
    e(valu("v_mul_u32_u24", vFo, S(77), l15))
    e(valu("v_add_u32", vFo, sStg, vFo))
    e(valu("v_lshl_add_u32", vFq, tB, "4", vFo))
    e(valu("v_lshl_add_u32", vFo, tB, "3", vFo))
    e(valu("v_xor_b32", KR[0], tB, l15))
    e(valu("v_lshlrev_b32", KR[0], "4", KR[0]))
    e(valu("v_lshl_add_u32", KR[0], l15, "8", KR[0]))
    for ks in range(1, 4): e(valu("v_xor_b32", KR[ks], str(ks * 64), KR[0]))
    if 'f' in mode:
        for ks in range(4): e(valu("v_add_u32", vQr[ks], sStg, KR[ks]))
    e(valu("v_lshl_add_u32", tC, tB, "2", lr_))
    e(valu("v_lshlrev_b32", VR[0], "8", tC))
    e(valu("v_and_b32", tC, "7", tC))
    e(valu("v_lshl_add_u32", VR[0], tC, "5", VR[0]))
    e(valu("v_lshl_add_u32", VR[0], lc, "3", VR[0]))
    e(valu("v_add_u32", VR[0], str(VBASE), VR[0]))
    for dt in range(1, 8): e(valu("v_xor_b32", VR[dt], str(dt * 32), VR[0]))
    e(op(f"v_cmp_eq_u32 vcc, 0, {rname(lc)}", 'valu', rd=[lc], wr=[VCC]))
    e(valu("v_mov_b32", tC, "0x3f803f80"))
    e(op(f"v_cndmask_b32 {rname(tC)}, 0, {rname(tC)}, vcc", 'valu', rd=[tC, VCC], wr=[tC]))
    for r in range(4): e(valu("v_accvgpr_write_b32", ONES + r, tC))
    do_stamp('pro')
    def kfirst():
        E.wait_for(sum([Kd[s] for s in pro_k], []))
        x = op("s_barrier", 'bar'); E.raw(x); bars[0] = x
        Kreads[0] = [kread(0, f) for f in korder]
        for f in range(8): e(Kreads[0][f])
    if earlybar: kfirst()
    dpos = [0]
    for k, t in enumerate(early):
        for n_, o_ in enumerate(prescale_ops(t, k % 2, pk)):
            e(o_)
            if n_ % (18 if pk else 22) == 0:
                nn = 0
                while nn < pro_dma and dpos[0] < len(dma) and 'after_bar' not in dma[dpos[0]].meta and all(a.done for a in dma[dpos[0]].meta.get('after', ())) and len(E.vm) < maxout:
                    x = dma[dpos[0]]; e(x); dpos[0] += 1; nn += x.kind != 'salu'
        rd = qfrag_reads(t, k % 2)
        if k < len(early) - 1 or True:
            for o_ in rd: e(o_)
    while not early and dpos[0] < len(dma) and 'after_bar' not in dma[dpos[0]].meta and all(a.done for a in dma[dpos[0]].meta.get('after', ())) and len(E.vm) < maxout:
        e(dma[dpos[0]]); dpos[0] += 1
    do_stamp('presc')
    if not earlybar: kfirst()

    heads = [0] * len(streams)
    tmp_owner = [None]
    TT = {T0, T1, T2, T3}
    def avail(o_, g):
        if o_.earliest > g: return False
        for a in o_.meta.get('after', ()):
            if not a.done: return False
        ab = o_.meta.get('after_bar')
        if ab is not None and ab not in bars: return False
        return True
    def tmp_ok(k, o_):
        return (not ((o_.rd | o_.wr) & TT)) or tmp_owner[0] in (None, k)
    def after_emit(k, o_):
        if not ((o_.rd | o_.wr) & TT): return
        tmp_owner[0] = k if (o_.wr & TT) else None
    MEMK = ('ds_r', 'ds_w', 'vm_ld', 'vm_dma', 'vm_st')
    live = list(range(len(streams)))
    def key(k):
        o_ = streams[k][heads[k]]; return (o_.deadline, getattr(o_, 'due', 0))
    def pick(g, mem, room=1000, only8=False):
        best = None
        for k in live:
            if heads[k] >= len(streams[k]): continue
            o_ = streams[k][heads[k]]
            if (o_.kind in MEMK) != mem or o_.cost > room or (only8 and o_.cost < 8): continue
            if not avail(o_, g) or not tmp_ok(k, o_) or not E.ready(o_): continue
            if best is None or key(k) < key(best): best = k
        return best
    def take(k):
        o_ = streams[k][heads[k]]; heads[k] += 1
        if o_.kind == 'qwait':
            o_.done = True; return E.wait_for(o_.qops)
        c = E.emit(o_); after_emit(k, o_); return c
    def force(g):
        c = 0
        while True:
            cand = [k for k in live if heads[k] < len(streams[k]) and streams[k][heads[k]].deadline <= g]
            if not cand: return c
            ok = [k for k in cand if avail(streams[k][heads[k]], g) and tmp_ok(k, streams[k][heads[k]])]
            if not ok:
                ko = tmp_owner[0]
                if ko is None:
                    assert avail(dma[dpos[0]], g), dma[dpos[0]]
                    c += E.emit(dma[dpos[0]]); dpos[0] += 1; continue
                ok = [ko]
            rdy = [k for k in ok if E.ready(streams[k][heads[k]])]
            c += take(min(rdy or ok, key=key))
    gapcost = []
    stamp_gaps = {qk0[first_of_step[x]] for x in (stamp or ()) if isinstance(x, int)}
    carry = 0
    lastdma = [-100]
    for g in range(NM):
        carry += force(g)
        carry += E.emit(M[g]) - 8
        if g: gapcost.append(carry)
        if g == 0: do_stamp('m0')
        used = 0
        for o_ in pinned[g]: used += E.emit(o_)
        idle = pick(g, False) is None
        while dpos[0] < len(dma) and used + 4 <= budget and len(E.vm) < maxout and g - lastdma[0] >= (dgap if g > 60 else 1):
            o_ = dma[dpos[0]]
            if o_.kind == 'salu': break
            used += E.emit(o_); dpos[0] += 1; lastdma[0] = g
        while used < budget:
            k = pick(g, True, 16 if used == 0 else budget - used)
            if k is None: break
            used += take(k)
        for f in post[g]: used += f()
        if g in stamp_gaps: stamp.add('gap'); do_stamp('gap')
        if dpos[0] < len(dma) and dma[dpos[0]].kind == 'salu' and avail(dma[dpos[0]], g) and used + 4 <= budget:
            used += E.emit(dma[dpos[0]]); dpos[0] += 1
        while True:
            room = budget - used
            k = pick(g, False, room)
            if k is None: break
            o_ = streams[k][heads[k]]
            if room >= 8 and o_.cost < 8 and o_.deadline - g > urg:
                k2 = pick(g, False, room, only8=True)
                if k2 is not None: k = k2
            used += take(k)
        carry = used
        if g % 64 == 0: live = [k for k in live if heads[k] < len(streams[k])]
    assert dpos[0] == len(dma), (dpos[0], len(dma))
    do_stamp('mend')
    while any(heads[k] < len(streams[k]) for k in live):
        k = pick(10 ** 6, True)
        if k is None: k = pick(10 ** 6, False)
        if k is None:
            k = min([k for k in live if heads[k] < len(streams[k]) and avail(streams[k][heads[k]], 10 ** 6)], key=key)
        take(k)
    do_stamp('epi')
    est = sum(max(16, 8 + c) for c in gapcost)
    if 'prof' in dbg:
        for s in range(NS):
            a = qk0[first_of_step[s]]; b = qk0[first_of_step[s + 1]] if s + 1 < NS else NM - 1
            sys.stderr.write(f"  step {s}: gaps {b-a} over {sum(max(0, c - 8) for c in gapcost[a:b])} idle {sum(max(0, 8 - c) for c in gapcost[a:b])}\n")
    ntail = len(E.out) - max(k for k, i_ in enumerate(E.out) if i_.kind == 'mfma')
    sys.stderr.write(f"tail instrs {ntail} ")
    sys.stderr.write(f"steps {NS} gaps over budget: {sum(1 for c in gapcost if c > 8)}  est main cycles {est}  nops {E.nnop} instrs {len(E.out)} bars {len(bpos)}\n")

    if 'padnop' in dbg or 'padmfma' in dbg:
        e(salu("s_mov_b32 s74, 100"))
        E.nop(16)
        E.label("Lpad")
        if 'padnop' in dbg:
            for k in range(6): E.raw(op("s_nop 7", 'nop'))
        else:
            for k in range(12): E.raw(mfma16(SB[0] + 4 * (k % 4), KF + 4 * (k % 8), QF[k % 6] + 4 * (k % 4), SB[0] + 4 * (k % 4)))
        e(salu("s_sub_u32 s74, s74, 1")); e(salu("s_cmp_lg_u32 s74, 0")); e(salu("s_cbranch_scc1 Lpad"))
        E.nop(16)
    spin = [x for x in dbg if isinstance(x, int)]
    if spin:
        E.raw(op("s_waitcnt vmcnt(0) lgkmcnt(0)", 'wait'))
        E.label("Lspin")
        E.raw(op("s_memrealtime s[98:99]", 'smem')); E.raw(op("s_waitcnt lgkmcnt(0)", 'wait'))
        e(salu("s_sub_u32 s74, s98, s100")); e(salu(f"s_cmp_lt_u32 s74, {spin[0]}")); e(salu("s_cbranch_scc1 Lspin"))
    e(salu(f"s_or_b64 s[74:75], {rname(sFl[0],2)}, {rname(sFl[1],2)}", rd=rng(sFl[0], 4)))
    for t in range(2, NT): e(salu(f"s_or_b64 s[74:75], s[74:75], {rname(sFl[t],2)}", rd=rng(sFl[t], 2)))
    if slow: e(salu("s_cbranch_scc1 Lslow"))
    if stamp:
        E.raw(op("s_waitcnt vmcnt(0)", 'wait')); E.vm = []
        do_stamp('drain')
        e(salu(f"s_lshl_b32 s74, s2, 2")); e(salu(f"s_add_u32 s74, s74, {rname(sW)}")); e(salu("s_lshl_b32 s74, s74, 6", wr=[S(74)]))
        e(valu("v_mov_b32", V(40), S(74)))
        for k in range(nstamp[0] + 1):
            e(valu("v_mov_b32", V(42 + k), S(100) if k == 0 else S(80 + 2 * (k - 1))))
        e(salu("s_mov_b32 s68, s78")); e(salu("s_mov_b32 s69, s79")); e(salu("s_mov_b32 s70, 0x100000")); e(salu("s_mov_b32 s71, 0x20000"))
        for k in range(nstamp[0] + 1):
            E.raw(op(f"buffer_store_dword v{42+k}, v40, s[68:71], 0 offen offset:{4*k}", 'vm_st', rd=[V(40), V(42 + k)]))
    if stamp and 'dbgbuf' in stamp:
        while E.out[-1].text.startswith('buffer_store_dword v'): E.out.pop(); E.pos.pop()
        e(salu("s_mov_b32 s70, 256"))
        e(valu("v_mov_b32", V(40), "0"))
        n = nstamp[0]
        e(valu("v_not_b32", V(60), V(42)))
        for k in range(1, n + 1): e(valu("v_sub_u32", V(60 + k), V(42 + k), V(42)))
        e(salu("s_mov_b64 exec, 1")); E.nop(4)
        E.raw(op(f"buffer_atomic_umax v{42+n}, v40, s[68:71], 0 offen", 'vm_st'))
        E.raw(op(f"buffer_atomic_umax v60, v40, s[68:71], 0 offen offset:4", 'vm_st'))
        for k in range(1, n + 1): E.raw(op(f"buffer_atomic_umax v{60+k}, v40, s[68:71], 0 offen offset:{4+4*k}", 'vm_st'))
    E.label("Lend")
    E.raw(op("s_endpgm", 'end'))

    if slow:
        def fence():
            E.raw(op("s_waitcnt vmcnt(0) lgkmcnt(0)", 'wait')); E.vm = []; E.lgkm = []
            E.nop(16)
        E.label("Lslow")
        fence()
        sTl, sSo, sJ, sJ2, sJ3 = S(74), S(75), S(76), S(77), S(38)
        vKg, vS0, vS1, t_ = V(92), V(93), V(94), V(95)
        e(valu("v_lshrrev_b32", t_, "4", vLin))
        e(valu("v_and_b32", vKg, "15", t_)); e(valu("v_lshlrev_b32", vKg, "8", vKg))
        e(valu("v_lshrrev_b32", t_, "4", t_)); e(valu("v_lshl_add_u32", vKg, t_, "4", vKg))
        e(valu("v_subrev_u32", vS0, sMK, vV0)); e(valu("v_subrev_u32", vS1, sMK, vV1))
        e(salu(f"s_sub_u32 s77, {rname(sStg)}, {VBASE}", wr=[S(77)]))
        for dt in range(8): e(valu("v_add_u32", VR[dt], S(77), VR[dt]))
        e(salu(f"s_mov_b32 {rname(sTl)}, 0", wr=[sTl]))
        e(salu(f"s_mov_b32 {rname(sSo)}, {rname(sQo[0])}", wr=[sSo]))
        E.label("Lslow_tile")
        e(salu(f"s_cmp_eq_u64 {rname(sFl[0],2)}, 0"))
        e(salu("s_cbranch_scc1 Lslow_next"))
        for i in range(4): e(bload(LAND[1] + 4 * i, vLin, sQ, sSo, i * 1024))
        for o_ in prescale_ops(1, 0): e(o_)
        for o_ in qfrag_reads(0, 0): e(o_)
        e(valu("v_mov_b32", T2, "0xff800000"))
        e(salu(f"s_mov_b32 {rname(sJ)}, 0", wr=[sJ]))
        fence()
        sb = SB[0]
        def kloads():
            e(salu(f"s_add_u32 {rname(sJ2)}, {rname(sJ)}, 4096", wr=[sJ2]))
            for f in range(8): e(bload(KF + 4 * f, vKg, sK, (sJ, sJ2)[f // 4], (f % 4) * 64))
        def qk(c0):
            for kt in range(2):
                for ks in range(4): e(mfma16(sb + 4 * kt, KF + 4 * (4 * kt + ks), QF[0] + 4 * ks, sb + 4 * kt if ks else c0))
        E.label("Lslow_p1")
        kloads(); qk(None)
        for r in range(0, 8, 2): e(valu("v_max3_f32", T2, T2, sb + r, sb + r + 1))
        e(salu(f"s_add_u32 {rname(sJ)}, {rname(sJ)}, 8192", wr=[sJ]))
        fence()
        e(salu(f"s_cmp_lt_u32 {rname(sJ)}, 131072")); e(salu("s_cbranch_scc1 Lslow_p1"))
        for o_ in rowmax_finish(T2, T1): e(o_)
        e(valu("v_sub_f32", T2, "0", T2))
        for r in range(4): e(valu("v_mov_b32", NEG[0] + r, T2))
        for r in range(32): e(valu("v_mov_b32", O[2] + r, "0"))
        for r in range(4): e(valu("v_accvgpr_write_b32", LACC[0] + r, "0"))
        e(salu(f"s_mov_b32 {rname(sJ)}, 0", wr=[sJ]))
        fence()
        E.label("Lslow_p2")
        kloads()
        for hh in range(4):
            e(salu(f"s_add_u32 m0, {rname(sStg)}, {hh*2048}", wr=[M0]))
            e(salu(f"s_add_u32 {rname(sJ3)}, {rname(sJ)}, {hh*2048}", wr=[sJ3]))
            e(bdma(vS0, sV, sJ3, 0)); e(bdma(vS1, sV, sJ3, 1024))
        fence()
        for dt in range(8):
            for j in range(2): e(ds_readtr(VF + 4 * dt + 2 * j, VR[dt], j * 4096))
        qk(NEG[0])
        for r in range(8): e(valu("v_exp_f32", sb + r, sb + r, kind='trans'))
        for j in range(4): e(valu("v_cvt_pk_bf16_f32", sb + j, sb + 2 * j, sb + 2 * j + 1))
        e(mfma16(LACC[0], ONES, sb, LACC[0]))
        for dt in range(8): e(mfma16(O[2] + 4 * dt, VF + 4 * dt, sb, O[2] + 4 * dt))
        e(salu(f"s_add_u32 {rname(sJ)}, {rname(sJ)}, 8192", wr=[sJ]))
        fence()
        e(salu(f"s_cmp_lt_u32 {rname(sJ)}, 131072")); e(salu("s_cbranch_scc1 Lslow_p2"))
        for o_ in epilogue_head(0, T0, RC[0])[0]: e(o_)
        for o_ in epilogue_body(O[2], RC[0], sSo, 0)[0]: e(o_)
        fence()
        E.label("Lslow_next")
        for t in range(NT - 1): e(salu(f"s_mov_b64 {rname(sFl[t],2)}, {rname(sFl[t+1],2)}"))
        e(salu(f"s_add_u32 {rname(sSo)}, {rname(sSo)}, 16384", wr=[sSo]))
        e(salu(f"s_add_u32 {rname(sTl)}, {rname(sTl)}, 1", wr=[sTl]))
        e(salu(f"s_cmp_lt_u32 {rname(sTl)}, {NT}")); e(salu("s_cbranch_scc1 Lslow_tile"))
        E.raw(op("s_endpgm", 'end'))

    def drop(i):
        if 'nobar' in dbg and i.kind == 'bar': return True
        if 'nodma' in dbg and i.kind == 'vm_dma': return True
        if 'novmw' in dbg and i.kind == 'wait' and 'vmcnt' in i.text and 'lgkm' not in i.text: return True
        if 'nods' in dbg and i.kind == 'ds_r': return True
        return False
    E.out = [i for i in E.out if not drop(i)]
    hdr = open("cdna_kernels/" + NAME + ".s.ref").read().split("\n")
    top = [l for l in hdr if l.startswith(";") and "@launch" not in l and not l.startswith("; Override") and not l.startswith("; grid=")]
    txt = "\n".join(top) + f"\n; @launch grid=(256,1,1) block=(256,1,1) lds={LDS}\n"
    txt += f""".amdgcn_target "amdgcn-amd-amdhsa--gfx950"
.text
.globl {NAME}_kernel
.p2align 8
.type {NAME}_kernel,@function
{NAME}_kernel:
""" + E.text() + f"""Lcode_end:
.section .rodata,"a"
.p2align 6
.amdhsa_kernel {NAME}_kernel
  .amdhsa_next_free_vgpr 512
  .amdhsa_next_free_sgpr 102
  .amdhsa_accum_offset 256
  .amdhsa_group_segment_fixed_size 0
  .amdhsa_kernarg_size 48
  .amdhsa_user_sgpr_count 2
  .amdhsa_user_sgpr_kernarg_segment_ptr 1
  .amdhsa_system_sgpr_workgroup_id_x 1
.end_amdhsa_kernel
"""
    return txt, LDS

from gen import META
def write(name, **kw):
    import subprocess
    txt, lds = build(**kw)
    open(name + ".s", "w").write(txt)
    open(name + ".full.s", "w").write(txt + META.format(n=NAME + "_kernel"))
    r = subprocess.run(["clang", "-x", "assembler", "-target", "amdgcn-amd-amdhsa", "-mcpu=gfx950", name + ".full.s", "-o", name + ".co"], capture_output=True, text=True)
    if r.returncode: print(r.stderr[:3000]); sys.exit(1)
    return lds

if __name__ == "__main__":
    print("lds", write("k2"))
```

```python
from gen2 import *
import shutil
fl=dict(ld_flags='', q_flags=' nt', pk=True, earlybar=True, sfine=4, qlead=30, d=(0,0,2,4,6,8), mode='ccffff', st_flags=' sc1', maxout=20, pre_kv=2, pro_dma=3)
V={"u0":dict(),
   "u1":dict(dbg=(2400,)),
   "u2":dict(dbg=(2700,)),
   "u3":dict(dbg=(3000,)),
   "u4":dict(dbg=(4000,))}
for n,kw in V.items():
    write(n, **fl, **kw); shutil.copy(n+".s","../cdna_kernels/"+n+".s")
```

```python
def V(n): return n
def A(n): return 256 + n
def S(n): return 1000 + n
M0 = 2000
VCC = 2001
def vr(n, c=1): return [V(n + i) for i in range(c)]
def ar(n, c=1): return [A(n + i) for i in range(c)]
def rname(r, c=1):
    if r < 256: p, n = 'v', r
    elif r < 512: p, n = 'a', r - 256
    else: p, n = 's', r - 1000
    return f"{p}{n}" if c == 1 else f"{p}[{n}:{n+c-1}]"
def rng(r, c): return list(range(r, r + c))

VALU_KINDS = ('valu', 'trans', 'perm', 'rfl')
class Ins:
    def __init__(s, text, kind, rd=(), wr=(), cost=None, **meta):
        s.text, s.kind, s.rd, s.wr = text, kind, set(rd), set(wr)
        s.cost = cost if cost is not None else (8 if kind in ('trans', 'mfma') else 4)
        s.meta = meta
        s.ws = 1
        s.earliest = meta.get('earliest', -1)
        s.deadline = meta.get('deadline', 1 << 30)
        s.done = False
    def __repr__(s): return s.text

def mfma(d, a, b, c):
    ct = '0' if c is None else rname(c, 16)
    i = Ins(f"v_mfma_f32_32x32x16_bf16 {rname(d,16)}, {rname(a,4)}, {rname(b,4)}, {ct}", 'mfma',
            rd=rng(a, 4) + rng(b, 4) + ([] if c is None else rng(c, 16)), wr=rng(d, 16))
    i.ab = set(rng(a, 4) + rng(b, 4)); i.c = c; i.d = d; i.n = 16; i.hz = (12, 10, 7)
    return i

def mfma16(d, a, b, c):
    ct = '0' if c is None else rname(c, 4)
    i = Ins(f"v_mfma_f32_16x16x32_bf16 {rname(d,4)}, {rname(a,4)}, {rname(b,4)}, {ct}", 'mfma',
            rd=rng(a, 4) + rng(b, 4) + ([] if c is None else rng(c, 4)), wr=rng(d, 4))
    i.ab = set(rng(a, 4) + rng(b, 4)); i.c = c; i.d = d; i.n = 4; i.hz = (8, 6, 3)
    return i

class Emitter:
    def __init__(s):
        s.out = []
        s.pos = []
        s.cur = 0
        s.lgkm = []
        s.vm = []
        s.nnop = 0
        s.window = 24
        s.cyc = 0
        s.mf = -100
        s.ldslat = 0
    def need(s, ins):
        n = 0
        k = len(s.out) - 1
        while k >= 0 and s.cur - s.pos[k] <= s.window:
            p = s.out[k]; gap = s.cur - s.pos[k] - p.ws
            req = 0
            pk, ck = p.kind, ins.kind
            if pk in VALU_KINDS:
                w = p.wr
                if ck == 'mfma' and (w & ins.rd): req = max(req, 2)
                if pk == 'trans' and ck != 'trans' and (w & ins.rd): req = max(req, 1)
                if ck == 'perm' and (w & ins.rd): req = max(req, 2)
                if ck == 'rfl' and (w & ins.rd): req = max(req, 1)
                sw = {r for r in w if r >= 1000}
                if sw & ins.rd:
                    if ck in VALU_KINDS: req = max(req, 2)
                    elif ck == 'salu': req = max(req, 4)
                    else: req = max(req, 5)
            if pk == 'mfma':
                w = p.wr
                h_rd, h_c, h_war = p.hz
                if ck == 'mfma':
                    same = ins.c == p.d and ins.n == p.n
                    if w & ins.ab: req = max(req, h_rd)
                    if ins.c is not None and (w & set(rng(ins.c, ins.n))) and not same: req = max(req, h_c)
                    if not same and (w & ins.wr): req = max(req, h_rd)
                elif w & (ins.rd | ins.wr): req = max(req, h_rd)
                if p.c is not None and ck != 'mfma' and (set(rng(p.c, p.n)) & ins.wr): req = max(req, h_war)
            if pk == 'salu' and M0 in p.wr and M0 in ins.rd and ck != 'salu': req = max(req, 1)
            if pk in ('vm_st', 'ds_w') and (p.meta.get('data', set()) & ins.wr): req = max(req, 2)
            n = max(n, req - gap)
            k -= 1
        return n
    def waits_needed(s, ins):
        res = []
        touch = ins.rd | ins.wr
        for q in (s.lgkm, s.vm):
            idx = -1
            for j, p in enumerate(q):
                if p.wr & touch: idx = j
            res.append(None if idx < 0 else len(q) - 1 - idx)
        return res
    def raw(s, ins):
        s.out.append(ins); s.pos.append(s.cur); s.cur += ins.ws; ins.done = True
        if ins.kind == 'mfma':
            s.cyc = max(s.cyc, s.mf + (16 if ins.n == 4 else 32)); s.mf = s.cyc
        ins.t = s.cyc; s.cyc += ins.cost
        if ins.kind in ('ds_r', 'ds_w'): s.lgkm.append(ins)
        if ins.kind in ('vm_ld', 'vm_dma', 'vm_st'): s.vm.append(ins)
    def nop(s, n):
        while n > 0:
            k = min(n, 8)
            i = Ins(f"s_nop {k-1}", 'nop', cost=4 * k); i.ws = k
            s.raw(i); n -= k; s.nnop += k
    def waitcnt(s, lg=None, vm=None):
        if lg is not None and lg >= len(s.lgkm): lg = None
        if vm is not None and vm >= len(s.vm): vm = None
        if lg is None and vm is None: return 0
        parts = []
        if vm is not None:
            vm = min(vm, 63)
            parts.append(f"vmcnt({vm})"); s.vm = s.vm[len(s.vm) - vm:] if vm else []
        if lg is not None:
            lg = min(lg, 15)
            parts.append(f"lgkmcnt({lg})"); s.lgkm = s.lgkm[len(s.lgkm) - lg:] if lg else []
        s.raw(Ins("s_waitcnt " + " ".join(parts), 'wait'))
        return 4
    def count_after(s, ops):
        lg = vm = None
        for op in ops:
            if op in s.lgkm:
                n = len(s.lgkm) - 1 - s.lgkm.index(op); lg = n if lg is None else min(lg, n)
            if op in s.vm:
                n = len(s.vm) - 1 - s.vm.index(op); vm = n if vm is None else min(vm, n)
        return lg, vm
    def wait_for(s, ops):
        for op in ops: assert op.done, op
        lg, vm = s.count_after(ops)
        return s.waitcnt(lg, vm)
    def ready(s, ins):
        if s.need(ins) > 0: return False
        lg, vm = s.waits_needed(ins)
        if lg is None and vm is None: return True
        if not ins.meta.get('may_wait', False): return False
        if lg is not None and s.cyc - s.lgkm[len(s.lgkm) - 1 - lg].t < s.ldslat: return False
        return True
    def emit(s, ins):
        c = 0
        lg, vm = s.waits_needed(ins)
        if lg is not None and lg > 15: lg = 15 if False else lg
        c += s.waitcnt(lg, vm)
        n = s.need(ins)
        if n > 0: s.nop(n); c += 4 * n
        s.raw(ins)
        return c + ins.cost
    def label(s, name):
        i = Ins(f"{name}:", 'label', cost=0); i.ws = 0; s.raw(i)
    def text(s):
        return "\n".join(("" if i.kind == 'label' else "    ") + i.text for i in s.out) + "\n"

def op(text, kind, rd=(), wr=(), **m): return Ins(text, kind, rd, wr, **m)
def salu(text, rd=(), wr=(), **m): return Ins(text, 'salu', rd, wr, **m)
def valu(name, d, *src, kind='valu', **m):
    t = f"{name} {rname(d)}, " + ", ".join(x if isinstance(x, str) else rname(x) for x in src)
    return Ins(t, kind, rd=[x for x in src if not isinstance(x, str)], wr=[d], **m)
def ds_read128(d, addr, off, **m): return Ins(f"ds_read_b128 {rname(d,4)}, {rname(addr)} offset:{off}", 'ds_r', rd=[addr], wr=rng(d, 4), **m)
def ds_readtr(d, addr, off, **m): return Ins(f"ds_read_b64_tr_b16 {rname(d,2)}, {rname(addr)} offset:{off}", 'ds_r', rd=[addr], wr=rng(d, 2), **m)
def ds_write128(addr, d, off, **m): return Ins(f"ds_write_b128 {rname(addr)}, {rname(d,4)} offset:{off}", 'ds_w', rd=[addr] + rng(d, 4), data=set(rng(d, 4)), cost=16, **m)
def ds_write64(addr, d, off, **m): return Ins(f"ds_write_b64 {rname(addr)}, {rname(d,2)} offset:{off}", 'ds_w', rd=[addr] + rng(d, 2), data=set(rng(d, 2)), cost=8, **m)
def bload(d, voff, srd, soff, off, flags="", **m):
    so = '0' if soff is None else rname(soff)
    return Ins(f"buffer_load_dwordx4 {rname(d,4)}, {rname(voff)}, {rname(srd,4)}, {so} offen offset:{off}{flags}", 'vm_ld',
               rd=[voff] + rng(srd, 4) + ([] if soff is None else [soff]), wr=rng(d, 4), **m)
def bdma(voff, srd, soff, off, flags="", **m):
    so = '0' if soff is None else rname(soff)
    return Ins(f"buffer_load_dwordx4 {rname(voff)}, {rname(srd,4)}, {so} offen offset:{off}{flags} lds", 'vm_dma',
               rd=[voff, M0] + rng(srd, 4) + ([] if soff is None else [soff]), **m)
def bstore(d, voff, srd, soff, off, flags="", **m):
    so = '0' if soff is None else rname(soff)
    return Ins(f"buffer_store_dwordx4 {rname(d,4)}, {rname(voff)}, {rname(srd,4)}, {so} offen offset:{off}{flags}", 'vm_st',
               rd=[voff] + rng(d, 4) + rng(srd, 4) + ([] if soff is None else [soff]), data=set(rng(d, 4)), cost=16, **m)

def ds_read2_64(d, addr, off8, **m):
    return Ins(f"ds_read2_b64 {rname(d,4)}, {rname(addr)} offset0:{off8} offset1:{off8+1}", 'ds_r', rd=[addr], wr=rng(d, 4), **m)
```

```python
import sys, math, struct
from asmlib import *

NAME = "standalone__gqa_softmax__near_ridge"
def f32bits(x): return struct.unpack("<I", struct.pack("<f", x))[0]

def build(d=(0, 0, 4, 4, 8, 8), RK=6, RV=5, lag=2, stamp=None, qpos=None, pre_kv=1, budget=8, st_flags=" nt", ld_flags=" nt",
          q_flags=" nt", pfcode=True, slow=True, thr_log2=30, rot=0, dbg=(), plead=70, bar_every=1, vlast=False, urg=2, espan=100, pro_dma=2, spread=True, qmix=2, maxout=10, dgap=4, mode='cccccc', pk=False, ksmaj=False, earlybar=False, sfine=None, qlead=None, tlb='', ldslat=180, fillnop=True, tight=True, o264=False, stgap=0, wgap=0, st_last=None, bar_end=1, wcost=8, scost=16, pair=True, oddfirst=False, margin=7, fmalead=3, safety=16, nres=0, nqslot=4, onelate=True, pkall=False, chunkgap=20, split01=False, loop=None, loopoff=0, pfn=3, lalign=0, pffirst=False, pf_flags='', pfs=False, pf2=None):
    E = Emitter()
    NT = 6
    E.ldslat = ldslat
    vLin, vK0, vK1, vV0, vV1, vRow, vFq, vFo = [V(i) for i in range(1, 9)]
    KR = [V(9 + i) for i in range(4)]
    VR = [V(13 + i) for i in range(8)]
    T0, T1, T2, T3 = V(22), V(23), V(24), V(25)
    ET = V(28)
    NB = 4 if pair else lag + 1
    SB = [V(36 + 8 * i) for i in range(4)]
    NEG = [V(68 + 4 * j) for j in range(NT)]
    RC = [NEG[j] + 1 for j in range(NT)]
    vQd = [V(92), V(93), V(94), V(95)]
    vQr = [V(0), V(21), V(26), V(27)]
    assert not o264
    O = [A(0)] + [V(96 + 32 * j) for j in range(5)]
    QF = [A(32 + 16 * j) for j in range(NT)]
    KF, VF = A(128), A(160)
    LACC = [A(192 + 4 * j) for j in range(NT)]
    ONES = A(216)
    DUM = A(220)
    LAND = [O[5] + 16] + [O[j] for j in range(1, 6)]
    sQ, sK, sV, sO, sC = S(12), S(16), S(20), S(24), S(28)
    sW, sMK, sMV, sScale, sMask = S(32), S(33), S(34), S(35), S(36)
    sT = [S(40 + i) for i in range(16)]
    sQo = [S(56 + j) for j in range(NT)]
    sFl = [S(62 + 2 * j) for j in range(NT)]
    sStg = S(39); sNScale = S(37); sThr = S(3)
    KBASE, VBASE = 0, RK * 8192
    STG = VBASE + RV * 8192
    STGW, STGH = {4: 16896, 3: 12800, 2: 8704}[nqslot], 4352
    SLOT = [0, 4352, 8704, 12800]
    LDS = STG + 4 * STGW
    assert RK * 8192 <= 65536 and LDS <= 163840
    nstamp = [0]
    def do_spin(name):
        for x in dbg:
            if isinstance(x, tuple) and x[1] == name:
                E.label("Lspin2")
                E.raw(op("s_memrealtime s[98:99]", 'smem')); E.raw(op("s_waitcnt lgkmcnt(0)", 'wait')); E.lgkm = []
                E.raw(salu("s_sub_u32 s74, s98, s100")); E.raw(salu(f"s_cmp_lt_u32 s74, {x[2]}")); E.raw(salu("s_cbranch_scc1 Lspin2"))
    def do_stamp(name='x'):
        do_spin(name)
        if not stamp or name not in stamp: return
        k = nstamp[0]; nstamp[0] += 1
        if 'both' in stamp:
            E.raw(op(f"s_memtime s[{80+2*k}:{81+2*k}]", 'smem')); k += 1; nstamp[0] += 1
        assert k < 10
        E.raw(op(f"{'s_memtime' if 'cyc' in stamp else 's_memrealtime'} s[{80+2*k}:{81+2*k}]", 'smem'))
        E.raw(op("s_waitcnt lgkmcnt(0)", 'wait')); E.lgkm = []

    NS = max(d) + 16
    U = [(s, t) for s in range(NS) for t in range(NT) if d[t] <= s < d[t] + 16]
    NU = len(U); assert NU == 96
    qk0 = {}; pv0 = {}; pvp = {}; pos = 0
    if pair:
        G = []
        for s in range(NS):
            us = [i for i, u in enumerate(U) if u[0] == s]
            if len(us) % 2 and oddfirst: G.append(us[:1]); us = us[1:]
            G += [us[k:k + 2] for k in range(0, len(us), 2)]
        glag = 1
    else:
        G = [[i] for i in range(NU)]; glag = lag
    def put_qk(g_):
        nonlocal pos
        for i in g_: qk0[i] = pos; pos += 8
    def put_pv(g_):
        nonlocal pos
        for i in g_: pvp[i] = [None] * 9
        for i in g_: pvp[i][0] = pos; pos += 1
        for dt in range(8):
            for i in (g_ if dt % 2 == 0 else g_[::-1]): pvp[i][1 + dt] = pos; pos += 1
        for i in g_: pv0[i] = pvp[i][0]
    for k in range(glag): put_qk(G[k])
    for k in range(len(G)):
        if k + glag < len(G): put_qk(G[k + glag])
        put_pv(G[k])
    NM = pos
    grp_of = {i: g_ for g_ in G for i in g_}
    first_of_step = {}; last_of_step = {}; first_of_tile = {}; last_of_tile = {}
    for i, (s, t) in enumerate(U):
        first_of_step.setdefault(s, i); last_of_step[s] = i
        first_of_tile.setdefault(t, i); last_of_tile[t] = i
    def cinit(i):
        f = first_of_tile[U[i][1]]
        return mode[U[i][1]] == 'c' and i > f and qk0[i] - (qk0[f] + 8) >= 14
    M = [None] * NM
    for i, (s, t) in enumerate(U):
        sb = SB[i % NB]
        for kt in range(2):
            for ks in range(4):
                c = sb + 4 * kt if ks else (NEG[t] if cinit(i) else None)
                M[qk0[i] + (2 * ks + kt if ksmaj else 4 * kt + ks)] = mfma16(sb + 4 * kt, KF + 4 * (4 * kt + ks), QF[t] + 4 * ks, c)
        fst = i == first_of_tile[t]
        M[pvp[i][0]] = mfma16(LACC[t], ONES, sb, None if fst else LACC[t])
        for dt in range(8):
            o = O[t] + 4 * dt
            M[pvp[i][1 + dt]] = mfma16(o, VF + 4 * dt, sb, None if fst else o)
    assert all(m is not None for m in M)

    def mkslots(R):
        sl = {}; prev = {}; c = 0; owner = {}
        for s in range(NS):
            if s % 16 < nres: sl[s] = s % 16
            else:
                sl[s] = nres + c % (R - nres); c += 1
                if sl[s] in owner: prev[s] = owner[sl[s]]
                owner[sl[s]] = s
        return sl, prev
    slK, prevK = mkslots(RK); slV, prevV = mkslots(RV)
    resident = lambda s: s >= 16 and s % 16 < nres
    korder = [4 * (n % 2) + n // 2 for n in range(8)] if ksmaj else list(range(8))
    def kread(s, f): return ds_read128(KF + 4 * f, KR[f % 4], KBASE + slK[s] * 8192 + (f // 4) * 4096)
    def vread(s, dt, j): return ds_readtr(VF + 4 * dt + 2 * j, VR[dt], slV[s] * 8192 + j * 4096)
    pinned = [[] for _ in range(NM)]
    post = [[] for _ in range(NM)]
    Kreads = {}; Vreads = {}; posr = {}; posw = {}
    lastr = {}; firstuse = {('V', 0): min(pvp[k][1] for k in G[0])}
    for s in range(1, NS):
        i = last_of_step[s - 1]
        Kreads[s] = [kread(s, f) for f in korder]
        wide = spread and qk0[first_of_step[s]] - qk0[i] >= 17
        W = qk0[first_of_step[s]] - qk0[i]
        kp = [max(f, (f * (W - margin)) // 7) for f in range(8)] if wide else list(range(8))
        if split01 and s == 1: kp = [max(1, x) for x in kp]
        for f in range(8): pinned[qk0[i] + kp[f]].append(Kreads[s][f])
        posr['K', s] = qk0[i] + kp[0]; lastr['K', s] = qk0[i] + kp[-1]
        Vreads[s] = []
        lu = [max(pvp[k][1 + dt] for k in grp_of[i]) for dt in range(8)]
        nu = min(pvp[k][1] for k in grp_of[first_of_step[s]])
        wide = spread and nu - lu[0] >= 17
        pp = lu[0] - 1; vpos = []
        for dt in range(8):
            for j in range(2):
                n_ = 2 * dt + j
                pp = max(lu[dt], lu[0] + (n_ * (nu - lu[0] - margin + 1)) // 15) if wide else lu[dt]
                vpos.append(pp)
                r = vread(s, dt, j); Vreads[s].append(r); pinned[pp].append(r)
        posr['V', s] = vpos[0]; lastr['V', s] = vpos[-1]; firstuse['V', s] = nu
    Vreads[0] = []
    v0pos = firstuse['V', 0] - 11
    for dt in range(8):
        for j in range(2):
            r = vread(0, dt, j); Vreads[0].append(r); pinned[v0pos + dt].append(r)
    posr['V', 0] = v0pos; lastr['V', 0] = v0pos + 7
    def addwait(key, rds, g):
        h = len(rds) // 2
        if lastr[key] + 3 <= g - 1:
            posw[key] = g - 1; post[g - 1].append(lambda: E.wait_for(rds))
        elif lastr[key] + 3 <= g + 3 and not (pair and key[0] == 'V'):
            post[g - 1].append(lambda: E.wait_for(rds[:h]))
            posw[key] = g + 3; post[g + 3].append(lambda: E.wait_for(rds))
        else: posw[key] = g + (17 if key[0] == 'V' else 7)
    for s in range(NS):
        if s >= 1: addwait(('K', s), Kreads[s], qk0[first_of_step[s]])
        else: posw['K', 0] = 7
        addwait(('V', s), Vreads[s], firstuse['V', s])
    bpos = [-1]; needpos = {}
    if sfine is None:
        cand = sorted({qk0[first_of_step[s]] - 1 for s in range(1, NS) if s % bar_every == 0 or s <= 2} | {v0pos - 1})
    else:
        cand = set()
        for (kind, s), p_ in posr.items():
            if s <= sfine or (kind == 'K' and ((s - sfine) % (bar_every if s <= 16 else bar_end) == 0)): cand.add(p_ - 1)
        if ('K', NS) not in posr and NS - 1 > sfine: pass
        cand = sorted(c_ for c_ in cand if c_ >= 0)
        if nres:
            keep = set()
            lateks = [k_ for k_ in posr if k_[1] >= 16 and not resident(k_[1])]
            if lateks and onelate:
                pl_ = min(posr[k_] for k_ in lateks)
                for k_ in lateks: needpos[k_] = pl_
            for key_, p_ in posr.items():
                if not resident(key_[1]): keep.add(max([-1] + [c_ for c_ in cand if c_ < needpos.get(key_, p_)]))
            cand = [c_ for c_ in cand if c_ in keep]
    bpos += cand
    need_at = {b: [] for b in range(len(bpos))}
    need_at[0].append(('K', 0))
    for key, p in posr.items():
        if resident(key[1]): continue
        b = max(k for k in range(len(bpos)) if bpos[k] < needpos.get(key, p))
        need_at[b].append(key)
    def release(key):
        return min(k for k in range(len(bpos)) if bpos[k] >= posw[key])

    bars = {}
    Kd = {}; Vd = {}; Qd = {}
    def kdma(s):
        ops = [salu(f"s_add_u32 m0, {rname(sMK)}, {slK[s] * 8192}", rd=[sMK], wr=[M0]),
               bdma(vK0, sK, sT[s % 16], 0, ld_flags), bdma(vK1, sK, sT[s % 16], 1024, ld_flags)]
        if s in prevK: ops[0].meta['after_bar'] = release(('K', prevK[s]))
        Kd[s] = ops[1:]; return ops
    def vdma(s):
        ops = [salu(f"s_add_u32 m0, {rname(sMV)}, {slV[s] * 8192}", rd=[sMV], wr=[M0]),
               bdma(vV0, sV, sT[s % 16], 0, ld_flags), bdma(vV1, sV, sT[s % 16], 1024, ld_flags)]
        if s in prevV: ops[0].meta['after_bar'] = release(('V', prevV[s]))
        Vd[s] = ops[1:]; return ops
    qhalf = {}
    def qld(t):
        if mode[t] == 'f':
            ops = [salu(f"s_add_u32 m0, {rname(sStg)}, {SLOT[qhalf[t]]}", rd=[sStg], wr=[M0])]
            ops += [bdma(vQd[i], sQ, sQo[t], i * 1024, q_flags) for i in range(4)]
            Qd[t] = ops; return [ops]
        ops = [bload(LAND[t] + 4 * i, vLin, sQ, sQo[t], i * 1024, q_flags) for i in range(4)]
        Qd[t] = ops; return [[o_] for o_ in ops]
    early = [t for t in range(NT) if d[t] == 0 and mode[t] == 'c' and not (split01 and t)]
    late = [t for t in range(NT) if t not in early]
    pro_f = [t for t in late if d[t] == 0]
    users = []
    for t in late: users.append((qk0[first_of_tile[t]] - 30, 'q', t))
    for t in range(NT): users.append((pv0[last_of_tile[t]] + 1, 'o', t))
    users.sort()
    nearly = len(early)
    for k, t in enumerate(early): qhalf[t] = k % 2
    uhalf = {}; nf = 0; nh = nearly
    for k, (_, kind, t) in enumerate(users):
        if kind == 'q' and mode[t] == 'f': uhalf[k] = (2 + nf) % nqslot; nf += 1
        else: uhalf[k] = nh % 2; nh += 1
        if kind == 'q': qhalf[t] = uhalf[k]
    if qpos is None: qpos = [max(1, d[t] - 2) for t in range(NT)]
    order = sorted([(posr[k], k) for k in posr if not resident(k[1])])
    dma = []
    placed = set(); qq = []
    if qlead is not None:
        ql = qlead if isinstance(qlead, (list, tuple)) else [qlead] * NT
        order = sorted(order + [(qk0[first_of_tile[t]] - ql[t], ('Q', t)) for t in late])
    for p, (kind, s) in order:
        if kind == 'Q':
            grps = qld(s)
            if s not in pro_f:
                for grp in grps: dma += grp
            placed.add(s); continue
        if kind == 'V' and qlead is None:
            for t in late:
                if qpos[t] <= s and t not in placed: qq += qld(t); placed.add(t)
        if not ((kind == 'K' and s <= pre_kv) or (kind == 'V' and s < pre_kv)):
            dma += kdma(s) if kind == 'K' else vdma(s)
        nq = 0
        while qq and nq < qmix:
            grp = qq.pop(0); dma += grp; nq += len(grp)
    assert placed == set(late) and not qq

    streams = []
    def prescale_ops(t, half, packed=False):
        ops = []
        for i in range(4):
            for j in range(4):
                x = LAND[t] + 4 * i + j
                a, b = (T0, T1) if j % 2 == 0 else (T2, T3)
                ops.append(valu("v_lshlrev_b32", a, "16", x, may_wait=True))
                ops.append(valu("v_and_b32", b, sMask, x))
                if packed:
                    ops.append(op(f"v_pk_mul_f32 {rname(a,2)}, {rname(a,2)}, {rname(sMV - 0,2)} op_sel:[0,1] op_sel_hi:[1,1]", 'valu', rd=[a, b, sScale], wr=[a, b]))
                else:
                    ops.append(valu("v_mul_f32", a, sScale, a))
                    ops.append(valu("v_mul_f32", b, sScale, b))
                ops.append(valu("v_cvt_pk_bf16_f32", x, a, b))
                if j % 2: ops.append(ds_write64(vRow, x - 1, half * STGH + i * 1088 + (j - 1) * 4))
        return ops
    def qfrag_reads(t, half, dst=None): return [ds_read128((dst or QF[t]) + 4 * ks, vFq, half * STGH + ks * 64) for ks in range(4)]
    def swap(kind, a, b): return op(f"v_permlane{kind}_swap_b32 {rname(a)}, {rname(b)}", 'perm', rd=[a, b], wr=[a, b])
    def rowmax_finish(x, y):
        return [valu("v_mov_b32", y, x), swap(32, x, y), valu("v_max_f32", x, x, y),
                valu("v_mov_b32", y, x), swap(16, x, y), valu("v_max_f32", x, x, y)]

    for i, (s, t) in enumerate(U):
        sb = SB[i % NB]; ops = []
        fst = i == first_of_tile[t]
        dl = pv0[i] if not (split01 and i == 0) else 8
        if fst:
            ops = [valu("v_max3_f32", T0, sb, sb + 1, sb + 2), valu("v_max3_f32", T1, sb + 3, sb + 4, sb + 5),
                   valu("v_max3_f32", T0, T0, sb + 6, sb + 7), valu("v_max_f32", T0, T0, T1)] + rowmax_finish(T0, T1)
            if mode[t] == 'f':
                ops.append(valu("v_mul_f32", NEG[t], sNScale, T0))
                for k_, o_ in enumerate(ops): o_.deadline = dl; o_.earliest = qk0[i] + 7; o_.due = -1
                negdone = ops[-1]
            else:
                ops.append(valu("v_sub_f32", NEG[t], "0", T0))
                nxt = [k for k in range(i + 1, NU) if U[k][1] == t and cinit(k)][0]
                for k_, o_ in enumerate(ops): o_.deadline = min(dl, qk0[nxt] - 1); o_.earliest = qk0[i] + 7; o_.due = -1
                negdone = ops[-1]
                mv = [valu("v_mov_b32", NEG[t] + r, NEG[t], deadline=qk0[nxt] - 1, after=[negdone]) for r in range(1, 4)]
                streams.append(mv)
            build.neg = getattr(build, 'neg', {}); build.neg[t] = negdone
        As = []; Es = []; Fs = []
        for j in range(4):
            a, b = sb + 2 * j, sb + 2 * j + 1
            pre_ = []
            if mode[t] == 'f':
                pre_ = [valu("v_fma_f32", a, a, sScale, NEG[t], after=[build.neg[t]]), valu("v_fma_f32", b, b, sScale, NEG[t])]
            elif not cinit(i):
                pre_ = [valu("v_add_f32", a, NEG[t], a, after=[build.neg[t]]), valu("v_add_f32", b, NEG[t], b)]
            ea, eb = valu("v_exp_f32", a, a, kind='trans'), valu("v_exp_f32", b, b, kind='trans')
            if pre_: ea.meta['after'] = [pre_[0]]; eb.meta['after'] = [pre_[1]]
            for k_, o_ in enumerate(pre_ + [ea, eb]):
                o_.deadline = dl; o_.earliest = qk0[i] + ((6 if ksmaj else 3) if j < 2 else 7)
                o_.due = 2 * j + 0.01 * k_ - (fmalead if o_ in pre_ else 0)
            As += pre_; Es += [ea, eb]
            cv = valu("v_cvt_pk_bf16_f32", sb + j, a, b, after=[ea, eb]); cv.deadline = dl; cv.due = 2 * j + 1.5
            Fs.append(cv)
        streams.append(ops + As); streams.append(Es); streams.append(Fs)

    def epilogue_head(t, l, rc):
        thr = f32bits(2.0 ** thr_log2)
        return [valu("v_accvgpr_read_b32", l, LACC[t]), valu("v_rcp_f32", rc, l, kind='trans')], \
               [op(f"v_cmp_nge_f32 {rname(sFl[t],2)}, {rname(sThr)}, {rname(l)}", 'valu', rd=[l, sThr], wr=rng(sFl[t], 2))]
    vFo2, vRow2 = V(26), [V(27), V(92), V(93), V(94)]
    def epilogue_body(o, rc, soff, half, early_=None, packed=False, fl_=None, slow_=False):
        fl_ = st_flags if fl_ is None else fl_
        use264 = o264 and not slow_
        ops = []; wr = []
        for dt in range(8):
            src = o + 4 * dt
            grp = []
            if src >= 256:
                x = ET + 4 * (dt % 2)
                for r in range(4): grp.append(valu("v_accvgpr_read_b32", x + r, src + r))
            else: x = src
            if packed:
                for r in (0, 2): grp.append(op(f"v_pk_mul_f32 {rname(x+r,2)}, {rname(x+r,2)}, {rname(rc-1,2)} op_sel:[0,1] op_sel_hi:[1,1]", 'valu', rd=[x+r, x+r+1, rc], wr=[x+r, x+r+1]))
            else:
                for r in range(4): grp.append(valu("v_mul_f32", x + r, rc, x + r))
            grp.append(valu("v_cvt_pk_bf16_f32", x, x, x + 1))
            grp.append(valu("v_cvt_pk_bf16_f32", x + 1, x + 2, x + 3))
            w = ds_write64(vFo2 if use264 else vFo, x, half * STGH + dt * 32); grp.append(w); wr.append(w); w.cost = wcost; w.meta['gapmin'] = ('w', wgap)
            if early_ is not None:
                for o_ in grp: o_.earliest = early_[dt]
            ops += grp
        if use264: rds = [ds_read2_64(o + 4 * i, vRow2[2 * half + i // 2], (i % 2) * 132) for i in range(4)]
        else: rds = [ds_read128(o + 4 * i, vRow, half * STGH + i * 1088) for i in range(4)]
        sts = [bstore(o + 4 * i, vLin, sO, soff, i * 1024, fl_, may_wait=True) for i in range(4)]
        for o_ in sts: o_.cost = scost; o_.meta['gapmin'] = ('s', stgap)
        return ops + rds + sts, wr, rds

    qdone = lambda t: M[qk0[first_of_tile[t]] + 7]
    lastrd = {k % 2: qdone(t) for k, t in enumerate(early)}
    for k, (_, kind, t) in enumerate(users):
        half = uhalf[k]
        if kind == 'q' and mode[t] == 'f':
            rd = [ds_read128(QF[t] + 4 * ks, vQr[ks], SLOT[half]) for ks in range(4)]
            dl = max(0, qk0[first_of_tile[t]] - 4)
            w = Ins("(wait q)", 'qwait', cost=4); w.qops = Qd[t][1:]; w.meta['after'] = [Qd[t][-1]]
            for o_ in [w] + rd: o_.deadline = dl; o_.earliest = dl - 6
            firstw = Qd[t][0]; lr = qdone(t)
            streams.append([w] + rd)
        elif kind == 'q':
            ops = prescale_ops(t, half, pk and t in pro_f); rd = qfrag_reads(t, half)
            dl = qk0[first_of_tile[t]] - 4
            pl = plead[t] if isinstance(plead, (list, tuple)) else plead
            if t in pro_f: dl += 4; pl = 0
            for o_ in ops + rd: o_.deadline = dl; o_.earliest = dl - pl; o_.due = 100
            ops[0].meta['after'] = [Qd[t][-1]]
            firstw = [o_ for o_ in ops if o_.kind == 'ds_w'][0]; lr = qdone(t)
            streams.append(ops + rd)
        else:
            i = last_of_tile[t]
            l = NEG[t] + 2
            h1, h2 = epilogue_head(t, l, RC[t])
            for o_ in h1 + h2: o_.earliest = pv0[i]
            b, wr, rds = epilogue_body(O[t], RC[t], sQo[t], half, early_=([NM] * 8 if (pk and i == NU - 1) else pvp[i][1:]), packed=(pk and (i == NU - 1 or pkall)), fl_=(st_last if (st_last is not None and i == NU - 1) else None))
            ops = h1 + h2 + b
            for n_, o_ in enumerate(ops):
                dl_ = pv0[i] + 14 + (n_ * espan) // len(ops)
                o_.deadline = dl_ if dl_ < NM - 1 else 100000 + k
            if pkall and i != NU - 1:
                nb = len(b) - 8
                c0 = max(pvp[k_][8] for k_ in grp_of[i]) + 6 + chunkgap * (grp_of[i].index(i))
                for n_, o_ in enumerate(b[:nb]):
                    o_.earliest = o_.deadline = min(c0, NM)
                    if c0 >= NM - 1: o_.deadline = 100000 + k
                for n_, o_ in enumerate(h1 + h2): o_.deadline = min(o_.deadline, c0 - 1)
                for n_, o_ in enumerate(b[nb:]):
                    dl_ = c0 + 4 + 6 * n_
                    o_.deadline = dl_ if dl_ < NM - 1 else 100000 + k
            firstw = wr[0]; lr = rds[-1]
            streams.append(ops)
        if half in lastrd: firstw.meta.setdefault('after', []).append(lastrd[half])
        lastrd[half] = lr

    if pf2 is not None:
        x = bload(DUM, vLin, sC, S(38), 0); x.wr = set(); x.earliest = qk0[first_of_step[pf2]]; x.deadline = x.earliest + 30
        streams.append([x])
    def mkbar(b):
        def f():
            ops = []
            for kind, x in need_at[b]: ops += (Kd if kind == 'K' else Vd)[x]
            c = 0
            while not all(o_.done for o_ in ops):
                assert avail(dma[dpos[0]], 10 ** 6), dma[dpos[0]]
                c += E.emit(dma[dpos[0]]); dpos[0] += 1
            c += E.wait_for(ops)
            x = op("s_barrier", 'bar'); E.raw(x); bars[b] = x
            return c + 4
        return f
    for b in range(1, len(bpos)): post[bpos[b]].append(mkbar(b))

    e = E.emit
    e(salu(f"s_cmp_ge_u32 s2, 256", rd=[S(2)]))
    e(salu("s_cbranch_scc1 Lend"))
    E.raw(op("s_load_dwordx8 s[4:11], s[0:1], 0", 'smem'))
    if stamp: E.raw(op(f"s_load_dwordx2 s[78:79], s[0:1], {32 if 'dbgbuf' in stamp else 40}", 'smem'))
    if stamp: E.raw(op(f"{'s_memtime' if 'cyc' in stamp else 's_memrealtime'} s[100:101]", 'smem'))
    if any(isinstance(x, (int, tuple)) for x in dbg): E.raw(op("s_memrealtime s[100:101]", 'smem'))
    lane, tA, tB, tC, l15, lr_, lc = [V(40 + i) for i in range(7)]
    e(valu("v_lshrrev_b32", tA, "6", V(0)))
    e(valu("v_and_b32", lane, "63", V(0)))
    e(op(f"v_readfirstlane_b32 {rname(sW)}, {rname(tA)}", 'rfl', rd=[tA], wr=[sW]))
    e(valu("v_lshlrev_b32", vLin, "4", lane))
    def code_prefetch():
        E.raw(op("s_getpc_b64 s[28:29]", 'salu'))
        E.label("Lpc")
        e(salu("s_mov_b32 s30, Lcode_end-Lpc")); e(salu("s_mov_b32 s31, 0x20000"))
        e(salu("s_bfe_u32 s77, s2, 0x20003")); e(salu("s_lshl_b32 s77, s77, 2")); e(salu(f"s_add_u32 s77, s77, {rname(sW)}", rd=[sW]))
        if pf2 is not None:
            e(salu("s_lshl_b32 s38, s77, 10")); e(salu("s_add_u32 s38, s38, Lpost-Lpc", wr=[S(38)]))
        e(salu(f"s_mul_i32 s77, s77, {1024 * pfn}", wr=[S(77)]))
        if pfs:
            e(salu(f"s_min_u32 s77, s77, Lcode_end-Lpc-{1024 * pfn}"))
            e(salu("s_add_u32 s28, s28, s77")); e(salu("s_addc_u32 s29, s29, 0"))
            e(salu("s_and_b32 s28, s28, 0xffffffc0"))
            for k in range(16 * pfn): E.raw(op(f"s_load_dwordx16 s[80:95], s[28:29], {64 * k}", 'smem'))
            return
        for k in range(pfn): e(bload(DUM, vLin, sC, S(77), 1024 * k, pf_flags)); E.vm[-1].wr = set()
    if pfcode and pffirst: code_prefetch()
    e(salu("s_and_b32 s74, s2, 7"))
    e(salu("s_lshr_b32 s75, s2, 3"))
    e(salu("s_lshl_b32 s74, s74, 3"))
    e(salu("s_lshr_b32 s76, s75, 2"))
    e(salu("s_add_u32 s74, s74, s76"))
    e(salu("s_and_b32 s75, s75, 3"))
    e(salu("s_lshl_b32 s76, s74, 2"))
    e(salu("s_add_u32 s76, s76, s75"))
    e(salu("s_mul_i32 s76, s76, 98304"))
    if rot > 0: e(salu(f"s_mul_i32 s38, s74, {rot*8192}"))
    if rot < 0: e(salu(f"s_mul_i32 s38, s75, {-rot*8192}"))
    e(salu("s_lshl_b32 s74, s74, 17"))
    e(valu("v_lshrrev_b32", tB, "4", lane))
    e(valu("v_lshl_add_u32", tC, tA, "3", tB))
    e(valu("v_and_b32", l15, "15", lane))
    e(valu("v_xor_b32", vK1, l15, tC))
    e(valu("v_and_b32", vK1, "15", vK1))
    e(valu("v_lshlrev_b32", tC, "8", tC))
    e(valu("v_lshl_add_u32", vK0, vK1, "4", tC))
    e(valu("v_xor_b32", vK1, "64", vK0))
    e(salu(f"s_lshl_b32 {rname(sMK)}, {rname(sW)}, 11", rd=[sW], wr=[sMK]))
    e(salu(f"s_lshl_b32 {rname(sQo[0])}, {rname(sW)}, 12", rd=[sW], wr=[sQo[0]]))
    for t in early + pro_f:
        if t: e(salu(f"s_add_u32 {rname(sQo[t])}, {rname(sQo[0])}, {t*16384}", wr=[sQo[t]]))
    def stg_setup():
        e(salu(f"s_mul_i32 {rname(sStg)}, {rname(sW)}, {STGW}", rd=[sW], wr=[sStg]))
        e(salu(f"s_add_u32 {rname(sStg)}, {rname(sStg)}, {STG}", wr=[sStg]))
        if 'f' in mode:
            e(valu("v_xor_b32", vQd[0], tB, l15))
            e(valu("v_lshlrev_b32", vQd[0], "4", vQd[0]))
            e(valu("v_lshl_add_u32", vQd[0], tB, "8", vQd[0]))
            for i in range(1, 4): e(valu("v_xor_b32", vQd[i], str(64 * i), vQd[0]))
    if pro_f: stg_setup()
    def tileoff(k):
        if not rot: e(salu(f"s_mov_b32 {rname(sT[k])}, {k*8192}", wr=[sT[k]]))
        else:
            e(salu(f"s_add_u32 {rname(sT[k])}, s38, {k*8192}", wr=[sT[k]]))
            e(salu(f"s_and_b32 {rname(sT[k])}, {rname(sT[k])}, 0x1ffff", wr=[sT[k]]))
    for k in range(0, pre_kv + 1): tileoff(k)
    e(salu(f"s_mov_b32 s18, 131072")); e(salu(f"s_mov_b32 s19, 0x20000"))
    e(salu(f"s_mov_b32 s14, 98304")); e(salu(f"s_mov_b32 s15, 0x20000"))
    E.raw(op("s_waitcnt lgkmcnt(0)", 'wait'))
    do_stamp('karg')
    e(salu("s_add_u32 s16, s6, s74")); e(salu("s_addc_u32 s17, s7, 0"))
    e(salu("s_add_u32 s12, s4, s76")); e(salu("s_addc_u32 s13, s5, 0"))
    pro_k = [x for kind, x in need_at[0] if kind == 'K']
    for s in sorted(pro_k):
        for o_ in kdma(s): e(o_)
    for t in sorted(early + pro_f):
        for o_ in (Qd[t] if t in pro_f else sum(qld(t), [])): e(o_)
    do_stamp('qiss')
    e(salu("s_add_u32 s20, s8, s74")); e(salu("s_addc_u32 s21, s9, 0"))
    e(salu(f"s_mov_b32 s22, 131072")); e(salu(f"s_mov_b32 s23, 0x20000"))
    e(salu(f"s_add_u32 {rname(sMV)}, {rname(sMK)}, {VBASE}", wr=[sMV]))
    e(valu("v_lshlrev_b32", vV0, "1", tB))
    e(valu("v_xor_b32", vV0, vV0, l15))
    e(valu("v_lshl_add_u32", vV0, vV0, "4", tC))
    e(valu("v_xor_b32", vV1, "128", vV0))
    for s in range(0, pre_kv + 1):
        if s not in pro_k:
            for o_ in kdma(s): e(o_)
        if s < pre_kv:
            for o_ in vdma(s): e(o_)
    if pfcode and not pffirst: code_prefetch()
    e(salu("s_add_u32 s24, s10, s76")); e(salu("s_addc_u32 s25, s11, 0"))
    e(salu(f"s_mov_b32 s26, 98304")); e(salu(f"s_mov_b32 s27, 0x20000"))
    if tlb:
        e(valu("v_lshlrev_b32", lr_, "12", lane))
        for srd in [sV, sK, sQ] + ([sO] if tlb == 'all' else []):
            e(op(f"buffer_load_dword {rname(DUM + 4)}, {rname(lr_)}, {rname(srd,4)}, 0 offen offset:2048", 'vm_ld', rd=[lr_] + rng(srd, 4)))
    c = math.log2(math.e) / math.sqrt(128.0)
    e(salu(f"s_mov_b32 {rname(sScale)}, {f32bits(c):#x}", wr=[sScale]))
    e(salu(f"s_mov_b32 {rname(sMask)}, 0xffff0000", wr=[sMask]))
    e(salu(f"s_mov_b32 {rname(sNScale)}, {f32bits(-c):#x}", wr=[sNScale]))
    e(salu(f"s_mov_b32 {rname(sThr)}, {f32bits(2.0 ** thr_log2):#x}", wr=[sThr]))
    for k in range(pre_kv + 1, 16): tileoff(k)
    for t in late:
        if t not in pro_f: e(salu(f"s_add_u32 {rname(sQo[t])}, {rname(sQo[0])}, {t*16384}", wr=[sQo[t]]))
    if not pro_f: stg_setup()
    e(salu(f"s_mov_b32 s77, 272", wr=[S(77)]))
    e(valu("v_bfe_u32", lr_, lane, "2", "2"))
    e(valu("v_and_b32", lc, "3", lane))
    e(valu("v_mul_u32_u24", vRow, S(77), tB))
    e(valu("v_lshl_add_u32", vRow, l15, "4", vRow))
    e(valu("v_add_u32", vRow, sStg, vRow))
    e(valu("v_mul_u32_u24", vFo, S(77), l15))
    e(valu("v_add_u32", vFo, sStg, vFo))
    e(valu("v_lshl_add_u32", vFq, tB, "4", vFo))
    e(valu("v_lshl_add_u32", vFo, tB, "3", vFo))
    if o264:
        e(salu(f"s_mov_b32 s77, 264", wr=[S(77)]))
        e(valu("v_mul_u32_u24", vFo2, S(77), l15))
        e(valu("v_add_u32", vFo2, sStg, vFo2))
        e(valu("v_lshl_add_u32", vFo2, tB, "3", vFo2))
        e(valu("v_mul_u32_u24", vRow2[0], S(77), tB))
        e(valu("v_lshl_add_u32", vRow2[0], l15, "4", vRow2[0]))
        e(valu("v_add_u32", vRow2[0], sStg, vRow2[0]))
        e(valu("v_add_u32", vRow2[1], "2112", vRow2[0]))
        e(valu("v_add_u32", vRow2[2], str(STGH), vRow2[0]))
        e(valu("v_add_u32", vRow2[3], str(STGH + 2112), vRow2[0]))
    e(valu("v_xor_b32", KR[0], tB, l15))
    e(valu("v_lshlrev_b32", KR[0], "4", KR[0]))
    e(valu("v_lshl_add_u32", KR[0], l15, "8", KR[0]))
    for ks in range(1, 4): e(valu("v_xor_b32", KR[ks], str(ks * 64), KR[0]))
    if 'f' in mode:
        for ks in range(4): e(valu("v_add_u32", vQr[ks], sStg, KR[ks]))
    e(valu("v_lshl_add_u32", tC, tB, "2", lr_))
    e(valu("v_lshlrev_b32", VR[0], "8", tC))
    e(valu("v_and_b32", tC, "7", tC))
    e(valu("v_lshl_add_u32", VR[0], tC, "5", VR[0]))
    e(valu("v_lshl_add_u32", VR[0], lc, "3", VR[0]))
    e(valu("v_add_u32", VR[0], str(VBASE), VR[0]))
    for dt in range(1, 8): e(valu("v_xor_b32", VR[dt], str(dt * 32), VR[0]))
    e(op(f"v_cmp_eq_u32 vcc, 0, {rname(lc)}", 'valu', rd=[lc], wr=[VCC]))
    e(valu("v_mov_b32", tC, "0x3f803f80"))
    e(op(f"v_cndmask_b32 {rname(tC)}, 0, {rname(tC)}, vcc", 'valu', rd=[tC, VCC], wr=[tC]))
    for r in range(4): e(valu("v_accvgpr_write_b32", ONES + r, tC))
    do_stamp('pro')
    if pfs: E.raw(op("s_waitcnt lgkmcnt(0)", 'wait'))
    def kfirst():
        E.wait_for(sum([Kd[s] for s in pro_k], []))
        x = op("s_barrier", 'bar'); E.raw(x); bars[0] = x
        Kreads[0] = [kread(0, f) for f in korder]
        for f in range(8): e(Kreads[0][f])
    if earlybar: kfirst()
    dpos = [0]
    for k, t in enumerate(early):
        for n_, o_ in enumerate(prescale_ops(t, k % 2, pk)):
            e(o_)
            if n_ % (18 if pk else 22) == 0:
                nn = 0
                while nn < pro_dma and dpos[0] < len(dma) and 'after_bar' not in dma[dpos[0]].meta and all(a.done for a in dma[dpos[0]].meta.get('after', ())) and len(E.vm) < maxout:
                    x = dma[dpos[0]]; e(x); dpos[0] += 1; nn += x.kind != 'salu'
        rd = qfrag_reads(t, k % 2)
        if k < len(early) - 1 or True:
            for o_ in rd: e(o_)
    while not early and dpos[0] < len(dma) and 'after_bar' not in dma[dpos[0]].meta and all(a.done for a in dma[dpos[0]].meta.get('after', ())) and len(E.vm) < maxout:
        e(dma[dpos[0]]); dpos[0] += 1
    do_stamp('presc')
    if not earlybar: kfirst()

    heads = [0] * len(streams)
    tmp_owner = [None]
    TT = {T0, T1, T2, T3}
    def avail(o_, g):
        if o_.earliest > g: return False
        for a in o_.meta.get('after', ()):
            if not a.done: return False
        ab = o_.meta.get('after_bar')
        if ab is not None and ab not in bars: return False
        return True
    def tmp_ok(k, o_):
        return (not ((o_.rd | o_.wr) & TT)) or tmp_owner[0] in (None, k)
    def after_emit(k, o_):
        if not ((o_.rd | o_.wr) & TT): return
        tmp_owner[0] = k if (o_.wr & TT) else None
    MEMK = ('ds_r', 'ds_w', 'vm_ld', 'vm_dma', 'vm_st')
    live = list(range(len(streams)))
    def key(k):
        o_ = streams[k][heads[k]]; return (o_.deadline, getattr(o_, 'due', 0))
    def pick(g, mem, room=1000, only8=False):
        best = None
        for k in live:
            if heads[k] >= len(streams[k]): continue
            o_ = streams[k][heads[k]]
            if (o_.kind in MEMK) != mem or o_.cost > room or (only8 and o_.cost < 8): continue
            if not avail(o_, g) or not tmp_ok(k, o_) or not E.ready(o_): continue
            gm = o_.meta.get('gapmin')
            if gm and g < 10 ** 6 and g - lastg.get(gm[0], -100) < gm[1]: continue
            if best is None or key(k) < key(best): best = k
        return best
    lastg = {}; curg = [0]
    def take(k):
        o_ = streams[k][heads[k]]; heads[k] += 1
        if o_.meta.get('gapmin'): lastg[o_.meta['gapmin'][0]] = curg[0]
        if o_.kind == 'qwait':
            o_.done = True; return E.wait_for(o_.qops)
        c = E.emit(o_); after_emit(k, o_); return c
    def force(g):
        c = 0
        while True:
            cand = [k for k in live if heads[k] < len(streams[k]) and streams[k][heads[k]].deadline <= g]
            if not cand: return c
            ok = [k for k in cand if avail(streams[k][heads[k]], g) and tmp_ok(k, streams[k][heads[k]])]
            if not ok:
                ko = tmp_owner[0]
                if ko is None:
                    assert avail(dma[dpos[0]], g), dma[dpos[0]]
                    c += E.emit(dma[dpos[0]]); dpos[0] += 1; continue
                ok = [ko]
            rdy = [k for k in ok if E.ready(streams[k][heads[k]])]
            if not rdy and fillnop:
                k = pick(g - 1, False, 4)
                if k is not None: c += take(k); continue
            c += take(min(rdy or ok, key=key))
    gapcost = []
    stamp_gaps = {qk0[first_of_step[x]] for x in (stamp or ()) if isinstance(x, int)}
    carry = 0
    lastdma = [-100]; stepidx = {}
    for g in range(NM):
        curg[0] = g
        for s_ in range(NS):
            if g == qk0[first_of_step[s_]] + loopoff: stepidx[s_] = len(E.out)
        carry += force(g)
        while fillnop and E.need(M[g]) > 0:
            k = pick(g - 1, False, 4)
            if k is None or (streams[k][heads[k]].wr & M[g].rd): break
            carry += take(k)
        carry += E.emit(M[g]) - 8
        if g: gapcost.append(carry)
        if g == 0: do_stamp('m0')
        used = 0
        for o_ in pinned[g]: used += E.emit(o_)
        idle = pick(g, False) is None
        while dpos[0] < len(dma) and used + 4 <= budget and len(E.vm) < maxout and g - lastdma[0] >= (dgap if g > 60 else 1):
            o_ = dma[dpos[0]]
            if o_.kind == 'salu': break
            used += E.emit(o_); dpos[0] += 1; lastdma[0] = g
        while used < budget:
            k = pick(g, True, 16 if used == 0 else budget - used)
            if k is None: break
            used += take(k)
        for f in post[g]: used += f()
        if g in stamp_gaps: stamp.add('gap'); do_stamp('gap')
        for s_ in range(NS):
            if g == qk0[first_of_step[s_]]: do_spin(s_)
        if dpos[0] < len(dma) and dma[dpos[0]].kind == 'salu' and avail(dma[dpos[0]], g) and used + 4 <= budget:
            used += E.emit(dma[dpos[0]]); dpos[0] += 1
        while True:
            room = budget - used
            k = pick(g, False, room)
            if k is None: break
            o_ = streams[k][heads[k]]
            if room >= 8 and o_.cost < 8:
                k2 = pick(g, False, room, only8=True)
                if k2 is not None:
                    D = o_.deadline
                    if streams[k2][heads[k2]].deadline <= D: k = k2 if D - g > urg else k
                    elif D >= 100000: k = k2
                    else:
                        work = sum(x.cost for kk in live for x in streams[kk][heads[kk]:] if x.deadline <= D)
                        cap = sum(budget - sum(x.cost for x in pinned[gg]) - 4 * len(post[gg]) for gg in range(g + 1, min(D, NM)))
                        if cap - work >= safety: k = k2
            used += take(k)
        carry = used
        if g % 64 == 0: live = [k for k in live if heads[k] < len(streams[k])]
    assert dpos[0] == len(dma), (dpos[0], len(dma))
    do_stamp('mend')
    while any(heads[k] < len(streams[k]) for k in live):
        k = pick(10 ** 6, True)
        if k is None: k = pick(10 ** 6, False)
        if k is None:
            k = min([k for k in live if heads[k] < len(streams[k]) and avail(streams[k][heads[k]], 10 ** 6)], key=key)
        take(k)
    do_stamp('epi')
    est = sum(max(16, 8 + c) for c in gapcost)
    if 'prof' in dbg:
        for s in range(NS):
            a = qk0[first_of_step[s]]; b = qk0[first_of_step[s + 1]] if s + 1 < NS else NM - 1
            sys.stderr.write(f"  step {s}: gaps {b-a} over {sum(max(0, c - 8) for c in gapcost[a:b])} idle {sum(max(0, 8 - c) for c in gapcost[a:b])}\n")
    ntail = len(E.out) - max(k for k, i_ in enumerate(E.out) if i_.kind == 'mfma')
    sys.stderr.write(f"tail instrs {ntail} ")
    sys.stderr.write(f"steps {NS} gaps over budget: {sum(1 for c in gapcost if c > 8)}  est main cycles {est}  nops {E.nnop} instrs {len(E.out)} bars {len(bpos)}\n")

    if 'padnop' in dbg or 'padmfma' in dbg:
        e(salu("s_mov_b32 s74, 100"))
        E.nop(16)
        E.label("Lpad")
        if 'padnop' in dbg:
            for k in range(6): E.raw(op("s_nop 7", 'nop'))
        else:
            for k in range(12): E.raw(mfma16(SB[0] + 4 * (k % 4), KF + 4 * (k % 8), QF[k % 6] + 4 * (k % 4), SB[0] + 4 * (k % 4)))
        e(salu("s_sub_u32 s74, s74, 1")); e(salu("s_cmp_lg_u32 s74, 0")); e(salu("s_cbranch_scc1 Lpad"))
        E.nop(16)
    spin = [x for x in dbg if isinstance(x, int)]
    if spin:
        E.raw(op("s_waitcnt vmcnt(0) lgkmcnt(0)", 'wait'))
        E.label("Lspin")
        E.raw(op("s_memrealtime s[98:99]", 'smem')); E.raw(op("s_waitcnt lgkmcnt(0)", 'wait'))
        e(salu("s_sub_u32 s74, s98, s100")); e(salu(f"s_cmp_lt_u32 s74, {spin[0]}")); e(salu("s_cbranch_scc1 Lspin"))
    e(salu(f"s_or_b64 s[74:75], {rname(sFl[0],2)}, {rname(sFl[1],2)}", rd=rng(sFl[0], 4)))
    for t in range(2, NT): e(salu(f"s_or_b64 s[74:75], s[74:75], {rname(sFl[t],2)}", rd=rng(sFl[t], 2)))
    if slow: e(salu("s_cbranch_scc1 Lslow"))
    if stamp:
        E.raw(op("s_waitcnt vmcnt(0)", 'wait')); E.vm = []
        do_stamp('drain')
        e(salu(f"s_lshl_b32 s74, s2, 2")); e(salu(f"s_add_u32 s74, s74, {rname(sW)}")); e(salu("s_lshl_b32 s74, s74, 6", wr=[S(74)]))
        e(valu("v_mov_b32", V(40), S(74)))
        for k in range(nstamp[0] + 1):
            e(valu("v_mov_b32", V(42 + k), S(100) if k == 0 else S(80 + 2 * (k - 1))))
        e(salu("s_mov_b32 s68, s78")); e(salu("s_mov_b32 s69, s79")); e(salu("s_mov_b32 s70, 0x100000")); e(salu("s_mov_b32 s71, 0x20000"))
        for k in range(nstamp[0] + 1):
            E.raw(op(f"buffer_store_dword v{42+k}, v40, s[68:71], 0 offen offset:{4*k}", 'vm_st', rd=[V(40), V(42 + k)]))
    if stamp and 'dbgbuf' in stamp:
        while E.out[-1].text.startswith('buffer_store_dword v'): E.out.pop(); E.pos.pop()
        e(salu("s_mov_b32 s70, 256"))
        e(valu("v_mov_b32", V(40), "0"))
        n = nstamp[0]
        e(valu("v_not_b32", V(60), V(42)))
        for k in range(1, n + 1): e(valu("v_sub_u32", V(60 + k), V(42 + k), V(42)))
        e(salu("s_mov_b64 exec, 1")); E.nop(4)
        E.raw(op(f"buffer_atomic_umax v{42+n}, v40, s[68:71], 0 offen", 'vm_st'))
        E.raw(op(f"buffer_atomic_umax v60, v40, s[68:71], 0 offen offset:4", 'vm_st'))
        for k in range(1, n + 1): E.raw(op(f"buffer_atomic_umax v{60+k}, v40, s[68:71], 0 offen offset:{4+4*k}", 'vm_st'))
    E.label("Lend")
    E.raw(op("s_endpgm", 'end'))

    if slow:
        def fence():
            E.raw(op("s_waitcnt vmcnt(0) lgkmcnt(0)", 'wait')); E.vm = []; E.lgkm = []
            E.nop(16)
        E.label("Lslow")
        fence()
        sTl, sSo, sJ, sJ2, sJ3 = S(74), S(75), S(76), S(77), S(38)
        vKg, vS0, vS1, t_ = V(92), V(93), V(94), V(95)
        e(valu("v_lshrrev_b32", t_, "4", vLin))
        e(valu("v_and_b32", vKg, "15", t_)); e(valu("v_lshlrev_b32", vKg, "8", vKg))
        e(valu("v_lshrrev_b32", t_, "4", t_)); e(valu("v_lshl_add_u32", vKg, t_, "4", vKg))
        e(valu("v_subrev_u32", vS0, sMK, vV0)); e(valu("v_subrev_u32", vS1, sMK, vV1))
        e(salu(f"s_sub_u32 s77, {rname(sStg)}, {VBASE}", wr=[S(77)]))
        for dt in range(8): e(valu("v_add_u32", VR[dt], S(77), VR[dt]))
        e(salu(f"s_mov_b32 {rname(sTl)}, 0", wr=[sTl]))
        e(salu(f"s_mov_b32 {rname(sSo)}, {rname(sQo[0])}", wr=[sSo]))
        E.label("Lslow_tile")
        e(salu(f"s_cmp_eq_u64 {rname(sFl[0],2)}, 0"))
        e(salu("s_cbranch_scc1 Lslow_next"))
        for i in range(4): e(bload(LAND[1] + 4 * i, vLin, sQ, sSo, i * 1024))
        for o_ in prescale_ops(1, 0): e(o_)
        for o_ in qfrag_reads(0, 0): e(o_)
        e(valu("v_mov_b32", T2, "0xff800000"))
        e(salu(f"s_mov_b32 {rname(sJ)}, 0", wr=[sJ]))
        fence()
        sb = SB[0]
        def kloads():
            e(salu(f"s_add_u32 {rname(sJ2)}, {rname(sJ)}, 4096", wr=[sJ2]))
            for f in range(8): e(bload(KF + 4 * f, vKg, sK, (sJ, sJ2)[f // 4], (f % 4) * 64))
        def qk(c0):
            for kt in range(2):
                for ks in range(4): e(mfma16(sb + 4 * kt, KF + 4 * (4 * kt + ks), QF[0] + 4 * ks, sb + 4 * kt if ks else c0))
        E.label("Lslow_p1")
        kloads(); qk(None)
        for r in range(0, 8, 2): e(valu("v_max3_f32", T2, T2, sb + r, sb + r + 1))
        e(salu(f"s_add_u32 {rname(sJ)}, {rname(sJ)}, 8192", wr=[sJ]))
        fence()
        e(salu(f"s_cmp_lt_u32 {rname(sJ)}, 131072")); e(salu("s_cbranch_scc1 Lslow_p1"))
        for o_ in rowmax_finish(T2, T1): e(o_)
        e(valu("v_sub_f32", T2, "0", T2))
        for r in range(4): e(valu("v_mov_b32", NEG[0] + r, T2))
        for r in range(32): e(valu("v_mov_b32", O[2] + r, "0"))
        for r in range(4): e(valu("v_accvgpr_write_b32", LACC[0] + r, "0"))
        e(salu(f"s_mov_b32 {rname(sJ)}, 0", wr=[sJ]))
        fence()
        E.label("Lslow_p2")
        kloads()
        for hh in range(4):
            e(salu(f"s_add_u32 m0, {rname(sStg)}, {hh*2048}", wr=[M0]))
            e(salu(f"s_add_u32 {rname(sJ3)}, {rname(sJ)}, {hh*2048}", wr=[sJ3]))
            e(bdma(vS0, sV, sJ3, 0)); e(bdma(vS1, sV, sJ3, 1024))
        fence()
        for dt in range(8):
            for j in range(2): e(ds_readtr(VF + 4 * dt + 2 * j, VR[dt], j * 4096))
        qk(NEG[0])
        for r in range(8): e(valu("v_exp_f32", sb + r, sb + r, kind='trans'))
        for j in range(4): e(valu("v_cvt_pk_bf16_f32", sb + j, sb + 2 * j, sb + 2 * j + 1))
        e(mfma16(LACC[0], ONES, sb, LACC[0]))
        for dt in range(8): e(mfma16(O[2] + 4 * dt, VF + 4 * dt, sb, O[2] + 4 * dt))
        e(salu(f"s_add_u32 {rname(sJ)}, {rname(sJ)}, 8192", wr=[sJ]))
        fence()
        e(salu(f"s_cmp_lt_u32 {rname(sJ)}, 131072")); e(salu("s_cbranch_scc1 Lslow_p2"))
        for o_ in epilogue_head(0, T0, RC[0])[0]: e(o_)
        for o_ in epilogue_body(O[2], RC[0], sSo, 0, slow_=True)[0]: e(o_)
        fence()
        E.label("Lslow_next")
        for t in range(NT - 1): e(salu(f"s_mov_b64 {rname(sFl[t],2)}, {rname(sFl[t+1],2)}"))
        e(salu(f"s_add_u32 {rname(sSo)}, {rname(sSo)}, 16384", wr=[sSo]))
        e(salu(f"s_add_u32 {rname(sTl)}, {rname(sTl)}, 1", wr=[sTl]))
        e(salu(f"s_cmp_lt_u32 {rname(sTl)}, {NT}")); e(salu("s_cbranch_scc1 Lslow_tile"))
        E.raw(op("s_endpgm", 'end'))

    if loop:
        import re as _re
        s0, s1, P = loop
        blocks = [E.out[stepidx[s_]:stepidx[s_ + P]] for s_ in range(s0, s1, P)]
        tre = _re.compile(r"\], s(4\d|5[0-5]) offen")
        norm = lambda b: [tre.sub("], sT offen", i.text) for i in b]
        regs = lambda b: [int(m.group(1)) for i in b for m in [tre.search(i.text)] if m]
        for k_, b in enumerate(blocks[1:], 1):
            assert norm(b) == norm(blocks[0]), ("loop blocks differ", k_, [(x, y) for x, y in zip(norm(b), norm(blocks[0])) if x != y][:3], len(b), len(blocks[0]))
            assert regs(b) == [r + P * k_ for r in regs(blocks[0])], (regs(b), regs(blocks[0]))
        body = list(blocks[0])
        rs = sorted(set(regs(body)))
        later = {int(m.group(1)) for i in E.out[stepidx[s1]:] for m in [tre.search(i.text)] if m}
        assert not (set(rs) & later), (rs, later)
        for r in rs:
            last = max(k_ for k_, i in enumerate(body) if _re.search(rf"\], s{r} offen", i.text))
            k_ = last + 1; placed_ = False
            while k_ < len(body):
                while k_ < len(body) and body[k_].kind != 'mfma': k_ += 1
                e_ = k_ + 1
                while e_ < len(body) and body[e_].kind != 'mfma': e_ += 1
                if e_ < len(body) and sum(i.cost for i in body[k_ + 1:e_]) <= 4:
                    body.insert(e_, salu(f"s_add_u32 s{r}, s{r}, {P * 8192}")); placed_ = True; break
                k_ = e_
            if not placed_: body.append(salu(f"s_add_u32 s{r}, s{r}, {P * 8192}"))
        lab = Ins("Lsteady:", 'label', cost=0)
        fin = (rs[0] - 40 + P * len(blocks)) * 8192
        if lalign: lab = Ins(f".p2align {lalign}\nLsteady:", 'label', cost=0)
        body = [lab] + body + [salu(f"s_cmp_lg_u32 s{rs[0]}, {fin}"), salu("s_cbranch_scc1 Lsteady"), Ins("Lpost:", 'label', cost=0)]
        E.out = E.out[:stepidx[s0]] + body + E.out[stepidx[s1]:]
        sys.stderr.write(f"loop: {len(blocks)} x {len(body)} instrs, tail gap {[i.text[:20] for i in body[-5:]]}\n")
    def drop(i):
        if 'nobar' in dbg and i.kind == 'bar': return True
        if 'nodma' in dbg and i.kind == 'vm_dma': return True
        if 'novmw' in dbg and i.kind == 'wait' and 'vmcnt' in i.text and 'lgkm' not in i.text: return True
        if 'nods' in dbg and i.kind == 'ds_r': return True
        if 'nost' in dbg and i.kind == 'vm_st' and 'dwordx4' in i.text: return True
        if 'nodsw' in dbg and i.kind == 'ds_w': return True
        return False
    E.out = [i for i in E.out if not drop(i)]
    hdr = open("cdna_kernels/" + NAME + ".s.ref").read().split("\n")
    top = [l for l in hdr if l.startswith(";") and "@launch" not in l and not l.startswith("; Override") and not l.startswith("; grid=")]
    txt = "\n".join(top) + f"\n; @launch grid=(256,1,1) block=(256,1,1) lds={LDS}\n"
    txt += f""".amdgcn_target "amdgcn-amd-amdhsa--gfx950"
.text
.globl {NAME}_kernel
.p2align 8
.type {NAME}_kernel,@function
{NAME}_kernel:
""" + E.text() + f"""Lcode_end:
.section .rodata,"a"
.p2align 6
.amdhsa_kernel {NAME}_kernel
  .amdhsa_next_free_vgpr 512
  .amdhsa_next_free_sgpr 102
  .amdhsa_accum_offset 256
  .amdhsa_group_segment_fixed_size 0
  .amdhsa_kernarg_size 48
  .amdhsa_user_sgpr_count 2
  .amdhsa_user_sgpr_kernarg_segment_ptr 1
  .amdhsa_system_sgpr_workgroup_id_x 1
.end_amdhsa_kernel
"""
    return txt, LDS

from gen import META
def write(name, **kw):
    import subprocess
    txt, lds = build(**kw)
    open(name + ".s", "w").write(txt)
    open(name + ".full.s", "w").write(txt + META.format(n=NAME + "_kernel"))
    r = subprocess.run(["clang", "-x", "assembler", "-target", "amdgcn-amd-amdhsa", "-mcpu=gfx950", name + ".full.s", "-o", name + ".co"], capture_output=True, text=True)
    if r.returncode: print(r.stderr[:3000]); sys.exit(1)
    return lds

if __name__ == "__main__":
    print("lds", write("k2"))
```

```python
import gen3, sys
BEST=dict(ld_flags=' nt', q_flags=' nt', pk=True, earlybar=True, sfine=3, qlead=30, mode='ccffff', maxout=14, pre_kv=1, pro_dma=2, st_flags=' nt', stgap=5, wgap=2, pkall=True, chunkgap=20, RK=6, RV=6, nres=4, nqslot=3, d=(0,0,2,2,4,4), loop=(6,14,2), loopoff=37, pfn=2, pffirst=False, lalign=3, tailopt=9, shadow=3, thr_log2=50)
if __name__=="__main__":
    gen3.write('cand', **BEST)
```

```python
import gen3, shutil
from mk import BEST
V={"u0":dict(),
   "u1":dict(ld_flags=''),
   "u2":dict(q_flags='', ld_flags='')}
for n,kw in V.items():
    gen3.write(n, **{**BEST,**kw}); shutil.copy(n+".s","../cdna_kernels/"+n+".s")
```

```python
import sys, math, struct
from asmlib import *

NAME = "standalone__gqa_softmax__near_ridge"
def f32bits(x): return struct.unpack("<I", struct.pack("<f", x))[0]

DOC = """;
;    16-row subtiles that start (and finish) staggered, walking the 16 key tiles of 32 cyclically.
;  * S^T = K Q^T and O^T = V^T P^T with v_mfma_f32_16x16x32_bf16, so P goes from accumulator to B operand in-lane;
;    ds_read_b64_tr_b16; the first four key tiles stay resident for the wrap-around steps.
;    max (two passes over all 512 keys).
"""

def build(d=(0, 0, 4, 4, 8, 8), RK=6, RV=5, lag=2, stamp=None, qpos=None, pre_kv=1, budget=8, st_flags=" nt", ld_flags=" nt",
          q_flags=" nt", pfcode=True, slow=True, thr_log2=30, rot=0, dbg=(), plead=70, bar_every=1, vlast=False, urg=2, espan=100, pro_dma=2, spread=True, qmix=2, maxout=10, dgap=4, mode='cccccc', pk=False, ksmaj=False, earlybar=False, sfine=None, qlead=None, tlb='', ldslat=180, fillnop=True, tight=True, o264=False, stgap=0, wgap=0, st_last=None, bar_end=1, wcost=8, scost=16, pair=True, oddfirst=False, margin=7, fmalead=3, safety=16, nres=0, nqslot=4, onelate=True, pkall=False, chunkgap=20, split01=False, loop=None, loopoff=0, pfn=3, lalign=0, pffirst=False, pf_flags='', pfs=False, pf2=None, tailopt=0, shadow=0, wlast=False, pchunk=False, q128=False):
    E = Emitter()
    NT = 6
    E.ldslat = ldslat
    vLin, vK0, vK1, vV0, vV1, vRow, vFq, vFo = [V(i) for i in range(1, 9)]
    KR = [V(9 + i) for i in range(4)]
    VR = [V(13 + i) for i in range(8)]
    T0, T1, T2, T3 = V(22), V(23), V(24), V(25)
    ET = V(28)
    NB = 4 if pair else lag + 1
    SB = [V(36 + 8 * i) for i in range(4)]
    NEG = [V(68 + 4 * j) for j in range(NT)]
    RC = [NEG[j] + 1 for j in range(NT)]
    vQd = [V(92), V(93), V(94), V(95)]
    vQr = [V(0), V(21), V(26), V(27)]
    O = [A(0)] + [V(96 + 32 * j) for j in range(5)]
    QF = [A(32 + 16 * j) for j in range(NT)]
    KF, VF = A(128), A(160)
    LACC = [A(192 + 4 * j) for j in range(NT)]
    ONES = A(216)
    DUM = A(220)
    LAND = [O[5] + 16] + [O[j] for j in range(1, 6)]
    sQ, sK, sV, sO, sC = S(12), S(16), S(20), S(24), S(28)
    sW, sMK, sMV, sScale, sMask = S(32), S(33), S(34), S(35), S(36)
    sT = [S(40 + i) for i in range(16)]
    sQo = [S(56 + j) for j in range(NT)]
    sFl = [S(62 + 2 * j) for j in range(NT)]
    sStg = S(39); sNScale = S(37); sThr = S(3)
    KBASE, VBASE = 0, RK * 8192
    STG = VBASE + RV * 8192
    STGW, STGH = {4: 16896, 3: 12800, 2: 8704}[nqslot], 4352
    SLOT = [0, 4352, 8704, 12800]
    LDS = STG + 4 * STGW
    assert RK * 8192 <= 65536 and LDS <= 163840
    nstamp = [0]
    def do_spin(name):
        for x in dbg:
            if isinstance(x, tuple) and x[1] == name:
                E.label("Lspin2")
                E.raw(op("s_memrealtime s[98:99]", 'smem')); E.raw(op("s_waitcnt lgkmcnt(0)", 'wait')); E.lgkm = []
                E.raw(salu("s_sub_u32 s74, s98, s100")); E.raw(salu(f"s_cmp_lt_u32 s74, {x[2]}")); E.raw(salu("s_cbranch_scc1 Lspin2"))
    def do_stamp(name='x'):
        do_spin(name)
        if not stamp or name not in stamp: return
        k = nstamp[0]; nstamp[0] += 1
        if 'both' in stamp:
            E.raw(op(f"s_memtime s[{80+2*k}:{81+2*k}]", 'smem')); k += 1; nstamp[0] += 1
        assert k < 10
        E.raw(op(f"{'s_memtime' if 'cyc' in stamp else 's_memrealtime'} s[{80+2*k}:{81+2*k}]", 'smem'))
        E.raw(op("s_waitcnt lgkmcnt(0)", 'wait')); E.lgkm = []

    NS = max(d) + 16
    U = [(s, t) for s in range(NS) for t in range(NT) if d[t] <= s < d[t] + 16]
    NU = len(U); assert NU == 96
    qk0 = {}; pv0 = {}; pvp = {}; pos = 0
    if pair:
        G = []
        for s in range(NS):
            us = [i for i, u in enumerate(U) if u[0] == s]
            if len(us) % 2 and oddfirst: G.append(us[:1]); us = us[1:]
            G += [us[k:k + 2] for k in range(0, len(us), 2)]
        glag = 1
    else:
        G = [[i] for i in range(NU)]; glag = lag
    def put_qk(g_):
        nonlocal pos
        for i in g_: qk0[i] = pos; pos += 8
    def put_pv(g_):
        nonlocal pos
        for i in g_: pvp[i] = [None] * 9
        for i in g_: pvp[i][0] = pos; pos += 1
        for dt in range(8):
            for i in (g_ if dt % 2 == 0 else g_[::-1]): pvp[i][1 + dt] = pos; pos += 1
        for i in g_: pv0[i] = pvp[i][0]
    for k in range(glag): put_qk(G[k])
    for k in range(len(G)):
        if k + glag < len(G): put_qk(G[k + glag])
        put_pv(G[k])
    NM = pos
    grp_of = {i: g_ for g_ in G for i in g_}
    first_of_step = {}; last_of_step = {}; first_of_tile = {}; last_of_tile = {}
    for i, (s, t) in enumerate(U):
        first_of_step.setdefault(s, i); last_of_step[s] = i
        first_of_tile.setdefault(t, i); last_of_tile[t] = i
    def cinit(i):
        f = first_of_tile[U[i][1]]
        return mode[U[i][1]] == 'c' and i > f and qk0[i] - (qk0[f] + 8) >= 14
    M = [None] * NM
    for i, (s, t) in enumerate(U):
        sb = SB[i % NB]
        for kt in range(2):
            for ks in range(4):
                c = sb + 4 * kt if ks else (NEG[t] if cinit(i) else None)
                M[qk0[i] + (2 * ks + kt if ksmaj else 4 * kt + ks)] = mfma16(sb + 4 * kt, KF + 4 * (4 * kt + ks), QF[t] + 4 * ks, c)
        fst = i == first_of_tile[t]
        M[pvp[i][0]] = mfma16(LACC[t], ONES, sb, None if fst else LACC[t])
        for dt in range(8):
            o = O[t] + 4 * dt
            M[pvp[i][1 + dt]] = mfma16(o, VF + 4 * dt, sb, None if fst else o)
    assert all(m is not None for m in M)

    def mkslots(R):
        sl = {}; prev = {}; c = 0; owner = {}
        for s in range(NS):
            if s % 16 < nres: sl[s] = s % 16
            else:
                sl[s] = nres + c % (R - nres); c += 1
                if sl[s] in owner: prev[s] = owner[sl[s]]
                owner[sl[s]] = s
        return sl, prev
    slK, prevK = mkslots(RK); slV, prevV = mkslots(RV)
    resident = lambda s: s >= 16 and s % 16 < nres
    korder = [4 * (n % 2) + n // 2 for n in range(8)] if ksmaj else list(range(8))
    def kread(s, f): return ds_read128(KF + 4 * f, KR[f % 4], KBASE + slK[s] * 8192 + (f // 4) * 4096)
    def vread(s, dt, j): return ds_readtr(VF + 4 * dt + 2 * j, VR[dt], slV[s] * 8192 + j * 4096)
    pinned = [[] for _ in range(NM)]
    post = [[] for _ in range(NM)]
    Kreads = {}; Vreads = {}; posr = {}; posw = {}
    lastr = {}; firstuse = {('V', 0): min(pvp[k][1] for k in G[0])}
    for s in range(1, NS):
        i = last_of_step[s - 1]
        Kreads[s] = [kread(s, f) for f in korder]
        wide = spread and qk0[first_of_step[s]] - qk0[i] >= 17
        W = qk0[first_of_step[s]] - qk0[i]
        kp = [max(f, (f * (W - margin)) // 7) for f in range(8)] if wide else list(range(8))
        if split01 and s == 1: kp = [max(1, x) for x in kp]
        for f in range(8): pinned[qk0[i] + kp[f]].append(Kreads[s][f])
        posr['K', s] = qk0[i] + kp[0]; lastr['K', s] = qk0[i] + kp[-1]
        Vreads[s] = []
        lu = [max(pvp[k][1 + dt] for k in grp_of[i]) for dt in range(8)]
        nu = min(pvp[k][1] for k in grp_of[first_of_step[s]])
        wide = spread and nu - lu[0] >= 17
        pp = lu[0] - 1; vpos = []
        for dt in range(8):
            for j in range(2):
                n_ = 2 * dt + j
                pp = max(lu[dt], lu[0] + (n_ * (nu - lu[0] - margin + 1)) // 15) if wide else lu[dt]
                vpos.append(pp)
                r = vread(s, dt, j); Vreads[s].append(r); pinned[pp].append(r)
        posr['V', s] = vpos[0]; lastr['V', s] = vpos[-1]; firstuse['V', s] = nu
    Vreads[0] = []
    v0pos = firstuse['V', 0] - 11
    for dt in range(8):
        for j in range(2):
            r = vread(0, dt, j); Vreads[0].append(r); pinned[v0pos + dt].append(r)
    posr['V', 0] = v0pos; lastr['V', 0] = v0pos + 7
    def addwait(key, rds, g):
        h = len(rds) // 2
        if lastr[key] + 3 <= g - 1:
            posw[key] = g - 1; post[g - 1].append(lambda: E.wait_for(rds))
        elif lastr[key] + 3 <= g + 3 and not (pair and key[0] == 'V'):
            post[g - 1].append(lambda: E.wait_for(rds[:h]))
            posw[key] = g + 3; post[g + 3].append(lambda: E.wait_for(rds))
        else: posw[key] = g + (17 if key[0] == 'V' else 7)
    for s in range(NS):
        if s >= 1: addwait(('K', s), Kreads[s], qk0[first_of_step[s]])
        else: posw['K', 0] = 7
        addwait(('V', s), Vreads[s], firstuse['V', s])
    bpos = [-1]; needpos = {}
    if sfine is None:
        cand = sorted({qk0[first_of_step[s]] - 1 for s in range(1, NS) if s % bar_every == 0 or s <= 2} | {v0pos - 1})
    else:
        cand = set()
        for (kind, s), p_ in posr.items():
            if s <= sfine or (kind == 'K' and ((s - sfine) % (bar_every if s <= 16 else bar_end) == 0)): cand.add(p_ - 1)
        if ('K', NS) not in posr and NS - 1 > sfine: pass
        cand = sorted(c_ for c_ in cand if c_ >= 0)
        if nres:
            keep = set()
            lateks = [k_ for k_ in posr if k_[1] >= 16 and not resident(k_[1])]
            if lateks and onelate:
                pl_ = min(posr[k_] for k_ in lateks)
                for k_ in lateks: needpos[k_] = pl_
            for key_, p_ in posr.items():
                if not resident(key_[1]): keep.add(max([-1] + [c_ for c_ in cand if c_ < needpos.get(key_, p_)]))
            cand = [c_ for c_ in cand if c_ in keep]
    bpos += cand
    need_at = {b: [] for b in range(len(bpos))}
    need_at[0].append(('K', 0))
    for key, p in posr.items():
        if resident(key[1]): continue
        b = max(k for k in range(len(bpos)) if bpos[k] < needpos.get(key, p))
        need_at[b].append(key)
    def release(key):
        return min(k for k in range(len(bpos)) if bpos[k] >= posw[key])

    bars = {}
    Kd = {}; Vd = {}; Qd = {}
    def kdma(s):
        ops = [salu(f"s_add_u32 m0, {rname(sMK)}, {slK[s] * 8192}", rd=[sMK], wr=[M0]),
               bdma(vK0, sK, sT[s % 16], 0, ld_flags), bdma(vK1, sK, sT[s % 16], 1024, ld_flags)]
        if s in prevK: ops[0].meta['after_bar'] = release(('K', prevK[s]))
        Kd[s] = ops[1:]; return ops
    def vdma(s):
        ops = [salu(f"s_add_u32 m0, {rname(sMV)}, {slV[s] * 8192}", rd=[sMV], wr=[M0]),
               bdma(vV0, sV, sT[s % 16], 0, ld_flags), bdma(vV1, sV, sT[s % 16], 1024, ld_flags)]
        if s in prevV: ops[0].meta['after_bar'] = release(('V', prevV[s]))
        Vd[s] = ops[1:]; return ops
    qhalf = {}
    def qld(t):
        if mode[t] == 'f':
            ops = [salu(f"s_add_u32 m0, {rname(sStg)}, {SLOT[qhalf[t]]}", rd=[sStg], wr=[M0])]
            ops += [bdma(vQd[i], sQ, sQo[t], i * 1024, q_flags) for i in range(4)]
            Qd[t] = ops; return [ops]
        ops = [bload(LAND[t] + 4 * i, vLin, sQ, sQo[t], i * 1024, q_flags) for i in range(4)]
        Qd[t] = ops; return [[o_] for o_ in ops]
    early = [t for t in range(NT) if d[t] == 0 and mode[t] == 'c' and not (split01 and t)]
    late = [t for t in range(NT) if t not in early]
    pro_f = [t for t in late if d[t] == 0]
    users = []
    for t in late: users.append((qk0[first_of_tile[t]] - 30, 'q', t))
    for t in range(NT): users.append((pv0[last_of_tile[t]] + 1, 'o', t))
    users.sort()
    nearly = len(early)
    for k, t in enumerate(early): qhalf[t] = k % 2
    uhalf = {}; nf = 0; nh = nearly
    for k, (_, kind, t) in enumerate(users):
        if kind == 'q' and mode[t] == 'f': uhalf[k] = (2 + nf) % nqslot; nf += 1
        else: uhalf[k] = nh % 2; nh += 1
        if kind == 'q': qhalf[t] = uhalf[k]
    if qpos is None: qpos = [max(1, d[t] - 2) for t in range(NT)]
    order = sorted([(posr[k], k) for k in posr if not resident(k[1])])
    dma = []
    placed = set(); qq = []
    if qlead is not None:
        ql = qlead if isinstance(qlead, (list, tuple)) else [qlead] * NT
        order = sorted(order + [(qk0[first_of_tile[t]] - ql[t], ('Q', t)) for t in late])
    for p, (kind, s) in order:
        if kind == 'Q':
            grps = qld(s)
            if s not in pro_f:
                for grp in grps: dma += grp
            placed.add(s); continue
        if kind == 'V' and qlead is None:
            for t in late:
                if qpos[t] <= s and t not in placed: qq += qld(t); placed.add(t)
        if not ((kind == 'K' and s <= pre_kv) or (kind == 'V' and s < pre_kv)):
            dma += kdma(s) if kind == 'K' else vdma(s)
        nq = 0
        while qq and nq < qmix:
            grp = qq.pop(0); dma += grp; nq += len(grp)
    assert placed == set(late) and not qq

    streams = []
    def prescale_ops(t, half, packed=False):
        ops = []
        for i in range(4):
            for j in range(4):
                x = LAND[t] + 4 * i + j
                a, b = (T0, T1) if j % 2 == 0 else (T2, T3)
                ops.append(valu("v_lshlrev_b32", a, "16", x, may_wait=True))
                ops.append(valu("v_and_b32", b, sMask, x))
                if packed:
                    ops.append(op(f"v_pk_mul_f32 {rname(a,2)}, {rname(a,2)}, {rname(sMV - 0,2)} op_sel:[0,1] op_sel_hi:[1,1]", 'valu', rd=[a, b, sScale], wr=[a, b]))
                else:
                    ops.append(valu("v_mul_f32", a, sScale, a))
                    ops.append(valu("v_mul_f32", b, sScale, b))
                ops.append(valu("v_cvt_pk_bf16_f32", x, a, b))
                if q128 and packed:
                    if j == 3: ops.append(ds_write128(vRow, x - 3, half * STGH + i * 1088))
                elif j % 2: ops.append(ds_write64(vRow, x - 1, half * STGH + i * 1088 + (j - 1) * 4))
        return ops
    def qfrag_reads(t, half, dst=None): return [ds_read128((dst or QF[t]) + 4 * ks, vFq, half * STGH + ks * 64) for ks in range(4)]
    def swap(kind, a, b): return op(f"v_permlane{kind}_swap_b32 {rname(a)}, {rname(b)}", 'perm', rd=[a, b], wr=[a, b])
    def rowmax_finish(x, y):
        return [valu("v_mov_b32", y, x), swap(32, x, y), valu("v_max_f32", x, x, y),
                valu("v_mov_b32", y, x), swap(16, x, y), valu("v_max_f32", x, x, y)]

    for i, (s, t) in enumerate(U):
        sb = SB[i % NB]; ops = []
        fst = i == first_of_tile[t]
        dl = pv0[i] if not (split01 and i == 0) else 8
        if fst:
            ops = [valu("v_max3_f32", T0, sb, sb + 1, sb + 2), valu("v_max3_f32", T1, sb + 3, sb + 4, sb + 5),
                   valu("v_max3_f32", T0, T0, sb + 6, sb + 7), valu("v_max_f32", T0, T0, T1)] + rowmax_finish(T0, T1)
            if mode[t] == 'f':
                ops.append(valu("v_mul_f32", NEG[t], sNScale, T0))
                for k_, o_ in enumerate(ops): o_.deadline = dl; o_.earliest = qk0[i] + 7; o_.due = -1
                negdone = ops[-1]
            else:
                ops.append(valu("v_sub_f32", NEG[t], "0", T0))
                nxt = [k for k in range(i + 1, NU) if U[k][1] == t and cinit(k)][0]
                for k_, o_ in enumerate(ops): o_.deadline = min(dl, qk0[nxt] - 1); o_.earliest = qk0[i] + 7; o_.due = -1
                negdone = ops[-1]
                mv = [valu("v_mov_b32", NEG[t] + r, NEG[t], deadline=qk0[nxt] - 1, after=[negdone]) for r in range(1, 4)]
                streams.append(mv)
            build.neg = getattr(build, 'neg', {}); build.neg[t] = negdone
        As = []; Es = []; Fs = []
        for j in range(4):
            a, b = sb + 2 * j, sb + 2 * j + 1
            pre_ = []
            if mode[t] == 'f':
                pre_ = [valu("v_fma_f32", a, a, sScale, NEG[t], after=[build.neg[t]]), valu("v_fma_f32", b, b, sScale, NEG[t])]
            elif not cinit(i):
                pre_ = [valu("v_add_f32", a, NEG[t], a, after=[build.neg[t]]), valu("v_add_f32", b, NEG[t], b)]
            ea, eb = valu("v_exp_f32", a, a, kind='trans'), valu("v_exp_f32", b, b, kind='trans')
            if pre_: ea.meta['after'] = [pre_[0]]; eb.meta['after'] = [pre_[1]]
            for k_, o_ in enumerate(pre_ + [ea, eb]):
                o_.deadline = dl; o_.earliest = qk0[i] + ((6 if ksmaj else 3) if j < 2 else 7)
                o_.due = 2 * j + 0.01 * k_ - (fmalead if o_ in pre_ else 0)
            As += pre_; Es += [ea, eb]
            cv = valu("v_cvt_pk_bf16_f32", sb + j, a, b, after=[ea, eb]); cv.deadline = dl; cv.due = 2 * j + 1.5
            Fs.append(cv)
        streams.append(ops + As); streams.append(Es); streams.append(Fs)

    def epilogue_head(t, l, rc):
        thr = f32bits(2.0 ** thr_log2)
        return [valu("v_accvgpr_read_b32", l, LACC[t]), valu("v_rcp_f32", rc, l, kind='trans')], \
               [op(f"v_cmp_nge_f32 {rname(sFl[t],2)}, {rname(sThr)}, {rname(l)}", 'valu', rd=[l, sThr], wr=rng(sFl[t], 2))]
    vRow2 = [V(92), V(93), V(94), V(95)]
    def row2_setup(dst, n):
        return [valu("v_lshrrev_b32", dst[1], "8", vLin), valu("v_lshlrev_b32", dst[1], "3", dst[1]), valu("v_sub_u32", dst[0], vRow, dst[1])] + \
               [valu("v_add_u32", dst[k_], str((k_ // 2) * STGH + (k_ % 2) * 2112), dst[0]) for k_ in range(1, n)]
    def epilogue_body(o, rc, soff, half, early_=None, packed=False, fl_=None, slow_=False, nplain=0):
        fl_ = st_flags if fl_ is None else fl_
        use264 = o264
        r2 = KR if slow_ else vRow2
        ops = []; wr = []
        for dt in range(8):
            src = o + 4 * dt
            grp = []
            if src >= 256:
                x = ET + 4 * (dt % 2)
                for r in range(4): grp.append(valu("v_accvgpr_read_b32", x + r, src + r))
            else: x = src
            if packed and dt >= nplain:
                for r in (0, 2): grp.append(op(f"v_pk_mul_f32 {rname(x+r,2)}, {rname(x+r,2)}, {rname(rc-1,2)} op_sel:[0,1] op_sel_hi:[1,1]", 'valu', rd=[x+r, x+r+1, rc], wr=[x+r, x+r+1]))
            else:
                for r in range(4): grp.append(valu("v_mul_f32", x + r, rc, x + r))
            grp.append(valu("v_cvt_pk_bf16_f32", x, x, x + 1))
            grp.append(valu("v_cvt_pk_bf16_f32", x + 1, x + 2, x + 3))
            w = ds_write64(vFo, x, half * STGH + dt * 32); grp.append(w); wr.append(w); w.cost = wcost; w.meta['gapmin'] = ('w', wgap)
            if early_ is not None:
                for o_ in grp: o_.earliest = early_[dt]
            ops += grp
        if wlast and o < 256 and not slow_: ops = [o_ for o_ in ops if o_.kind != 'ds_w'] + wr
        if use264: rds = [ds_read2_64(o + 4 * i, r2[2 * half + i // 2], (i % 2) * 132) for i in range(4)]
        else: rds = [ds_read128(o + 4 * i, vRow, half * STGH + i * 1088) for i in range(4)]
        sts = [bstore(o + 4 * i, vLin, sO, soff, i * 1024, fl_, may_wait=True) for i in range(4)]
        for o_ in sts: o_.cost = scost; o_.meta['gapmin'] = ('s', stgap)
        return ops + rds + sts, wr, rds

    qdone = lambda t: M[qk0[first_of_tile[t]] + 7]
    lastrd = {k % 2: qdone(t) for k, t in enumerate(early)}
    for k, (_, kind, t) in enumerate(users):
        half = uhalf[k]
        if kind == 'q' and mode[t] == 'f':
            rd = [ds_read128(QF[t] + 4 * ks, vQr[ks], SLOT[half]) for ks in range(4)]
            dl = max(0, qk0[first_of_tile[t]] - 4)
            w = Ins("(wait q)", 'qwait', cost=4); w.qops = Qd[t][1:]; w.meta['after'] = [Qd[t][-1]]
            for o_ in [w] + rd: o_.deadline = dl; o_.earliest = dl - 6
            firstw = Qd[t][0]; lr = qdone(t)
            streams.append([w] + rd)
        elif kind == 'q':
            ops = prescale_ops(t, half, pk and (t in pro_f or pchunk)); rd = qfrag_reads(t, half)
            dl = qk0[first_of_tile[t]] - 4
            pl = plead[t] if isinstance(plead, (list, tuple)) else plead
            if t in pro_f: dl += 4; pl = 0
            if pchunk: pl = 0
            for o_ in ops + rd: o_.deadline = dl; o_.earliest = dl - pl; o_.due = 100
            ops[0].meta['after'] = [Qd[t][-1]]
            firstw = [o_ for o_ in ops if o_.kind == 'ds_w'][0]; lr = qdone(t)
            streams.append(ops + rd)
        else:
            i = last_of_tile[t]
            l = NEG[t] + 2
            h1, h2 = epilogue_head(t, l, RC[t])
            for o_ in h1 + h2: o_.earliest = pv0[i]
            fin = i in G[-1]
            b, wr, rds = epilogue_body(O[t], RC[t], sQo[t], half, nplain=(shadow if fin else 0), early_=(pvp[i][1:1 + shadow] + [NM] * (8 - shadow) if (pk and fin) else pvp[i][1:]), packed=(pk and (fin or pkall)), fl_=(st_last if (st_last is not None and i == NU - 1) else None))
            ops = h1 + h2 + b
            for n_, o_ in enumerate(ops):
                dl_ = pv0[i] + 14 + (n_ * espan) // len(ops)
                o_.deadline = dl_ if dl_ < NM - 1 else 100000 + k
            if fin:
                for o_ in b: o_.deadline = 100000 + k
            if pkall and not fin:
                nb = len(b) - 8
                c0 = max(pvp[k_][8] for k_ in grp_of[i]) + 6 + chunkgap * (grp_of[i].index(i))
                for n_, o_ in enumerate(b[:nb]):
                    o_.earliest = o_.deadline = min(c0, NM)
                    if c0 >= NM - 1: o_.deadline = 100000 + k
                for n_, o_ in enumerate(h1 + h2): o_.deadline = min(o_.deadline, c0 - 1)
                for n_, o_ in enumerate(b[nb:]):
                    dl_ = c0 + 4 + 6 * n_
                    o_.deadline = dl_ if dl_ < NM - 1 else 100000 + k
            firstw = wr[0]; lr = rds[-1]
            streams.append(ops)
        if half in lastrd: firstw.meta.setdefault('after', []).append(lastrd[half])
        lastrd[half] = lr

    if pf2 is not None:
        x = bload(DUM, vLin, sC, S(38), 0); x.wr = set(); x.earliest = qk0[first_of_step[pf2]]; x.deadline = x.earliest + 30
        streams.append([x])
    if o264:
        ops = row2_setup(vRow2, 4)
        lastq = max(late, key=lambda t: qk0[first_of_tile[t]])
        ops[0].meta['after'] = [Qd[t][-1] for t in late]
        for o_ in ops: o_.deadline = qk0[first_of_step[15]] + 40; o_.earliest = qk0[first_of_step[15]]
        streams.append(ops)
    def mkbar(b):
        def f():
            ops = []
            for kind, x in need_at[b]: ops += (Kd if kind == 'K' else Vd)[x]
            c = 0
            while not all(o_.done for o_ in ops):
                assert avail(dma[dpos[0]], 10 ** 6), dma[dpos[0]]
                c += E.emit(dma[dpos[0]]); dpos[0] += 1
            c += E.wait_for(ops)
            x = op("s_barrier", 'bar'); E.raw(x); bars[b] = x
            return c + 4
        return f
    for b in range(1, len(bpos)): post[bpos[b]].append(mkbar(b))

    e = E.emit
    e(salu(f"s_cmp_ge_u32 s2, 256", rd=[S(2)]))
    e(salu("s_cbranch_scc1 Lend"))
    E.raw(op("s_load_dwordx8 s[4:11], s[0:1], 0", 'smem'))
    if stamp: E.raw(op(f"s_load_dwordx2 s[78:79], s[0:1], {32 if 'dbgbuf' in stamp else 40}", 'smem'))
    if stamp: E.raw(op(f"{'s_memtime' if 'cyc' in stamp else 's_memrealtime'} s[100:101]", 'smem'))
    if any(isinstance(x, (int, tuple)) for x in dbg): E.raw(op("s_memrealtime s[100:101]", 'smem'))
    lane, tA, tB, tC, l15, lr_, lc = [V(40 + i) for i in range(7)]
    e(valu("v_lshrrev_b32", tA, "6", V(0)))
    e(valu("v_and_b32", lane, "63", V(0)))
    e(op(f"v_readfirstlane_b32 {rname(sW)}, {rname(tA)}", 'rfl', rd=[tA], wr=[sW]))
    e(valu("v_lshlrev_b32", vLin, "4", lane))
    def code_prefetch():
        E.raw(op("s_getpc_b64 s[28:29]", 'salu'))
        E.label("Lpc")
        e(salu("s_mov_b32 s30, Lcode_end-Lpc")); e(salu("s_mov_b32 s31, 0x20000"))
        e(salu("s_bfe_u32 s77, s2, 0x20003")); e(salu("s_lshl_b32 s77, s77, 2")); e(salu(f"s_add_u32 s77, s77, {rname(sW)}", rd=[sW]))
        if pf2 is not None:
            e(salu("s_lshl_b32 s38, s77, 10")); e(salu("s_add_u32 s38, s38, Lpost-Lpc", wr=[S(38)]))
        e(salu(f"s_mul_i32 s77, s77, {1024 * pfn}", wr=[S(77)]))
        if pfs:
            e(salu(f"s_min_u32 s77, s77, Lcode_end-Lpc-{1024 * pfn}"))
            e(salu("s_add_u32 s28, s28, s77")); e(salu("s_addc_u32 s29, s29, 0"))
            e(salu("s_and_b32 s28, s28, 0xffffffc0"))
            for k in range(16 * pfn): E.raw(op(f"s_load_dwordx16 s[80:95], s[28:29], {64 * k}", 'smem'))
            return
        for k in range(pfn): e(bload(DUM, vLin, sC, S(77), 1024 * k, pf_flags)); E.vm[-1].wr = set()
    if pfcode and pffirst: code_prefetch()
    e(salu("s_and_b32 s74, s2, 7"))
    e(salu("s_lshr_b32 s75, s2, 3"))
    e(salu("s_lshl_b32 s74, s74, 3"))
    e(salu("s_lshr_b32 s76, s75, 2"))
    e(salu("s_add_u32 s74, s74, s76"))
    e(salu("s_and_b32 s75, s75, 3"))
    e(salu("s_lshl_b32 s76, s74, 2"))
    e(salu("s_add_u32 s76, s76, s75"))
    e(salu("s_mul_i32 s76, s76, 98304"))
    if rot > 0: e(salu(f"s_mul_i32 s38, s74, {rot*8192}"))
    if rot < 0: e(salu(f"s_mul_i32 s38, s75, {-rot*8192}"))
    e(salu("s_lshl_b32 s74, s74, 17"))
    e(valu("v_lshrrev_b32", tB, "4", lane))
    e(valu("v_lshl_add_u32", tC, tA, "3", tB))
    e(valu("v_and_b32", l15, "15", lane))
    e(valu("v_xor_b32", vK1, l15, tC))
    e(valu("v_and_b32", vK1, "15", vK1))
    e(valu("v_lshlrev_b32", tC, "8", tC))
    e(valu("v_lshl_add_u32", vK0, vK1, "4", tC))
    e(valu("v_xor_b32", vK1, "64", vK0))
    e(salu(f"s_lshl_b32 {rname(sMK)}, {rname(sW)}, 11", rd=[sW], wr=[sMK]))
    e(salu(f"s_lshl_b32 {rname(sQo[0])}, {rname(sW)}, 12", rd=[sW], wr=[sQo[0]]))
    for t in early + pro_f:
        if t: e(salu(f"s_add_u32 {rname(sQo[t])}, {rname(sQo[0])}, {t*16384}", wr=[sQo[t]]))
    def stg_setup():
        e(salu(f"s_mul_i32 {rname(sStg)}, {rname(sW)}, {STGW}", rd=[sW], wr=[sStg]))
        e(salu(f"s_add_u32 {rname(sStg)}, {rname(sStg)}, {STG}", wr=[sStg]))
        if 'f' in mode:
            e(valu("v_xor_b32", vQd[0], tB, l15))
            e(valu("v_lshlrev_b32", vQd[0], "4", vQd[0]))
            e(valu("v_lshl_add_u32", vQd[0], tB, "8", vQd[0]))
            for i in range(1, 4): e(valu("v_xor_b32", vQd[i], str(64 * i), vQd[0]))
    if pro_f: stg_setup()
    def tileoff(k):
        if not rot: e(salu(f"s_mov_b32 {rname(sT[k])}, {k*8192}", wr=[sT[k]]))
        else:
            e(salu(f"s_add_u32 {rname(sT[k])}, s38, {k*8192}", wr=[sT[k]]))
            e(salu(f"s_and_b32 {rname(sT[k])}, {rname(sT[k])}, 0x1ffff", wr=[sT[k]]))
    for k in range(0, pre_kv + 1): tileoff(k)
    e(salu(f"s_mov_b32 s18, 131072")); e(salu(f"s_mov_b32 s19, 0x20000"))
    e(salu(f"s_mov_b32 s14, 98304")); e(salu(f"s_mov_b32 s15, 0x20000"))
    E.raw(op("s_waitcnt lgkmcnt(0)", 'wait'))
    do_stamp('karg')
    e(salu("s_add_u32 s16, s6, s74")); e(salu("s_addc_u32 s17, s7, 0"))
    e(salu("s_add_u32 s12, s4, s76")); e(salu("s_addc_u32 s13, s5, 0"))
    pro_k = [x for kind, x in need_at[0] if kind == 'K']
    for s in sorted(pro_k):
        for o_ in kdma(s): e(o_)
    for t in sorted(early + pro_f):
        for o_ in (Qd[t] if t in pro_f else sum(qld(t), [])): e(o_)
    do_stamp('qiss')
    e(salu("s_add_u32 s20, s8, s74")); e(salu("s_addc_u32 s21, s9, 0"))
    e(salu(f"s_mov_b32 s22, 131072")); e(salu(f"s_mov_b32 s23, 0x20000"))
    e(salu(f"s_add_u32 {rname(sMV)}, {rname(sMK)}, {VBASE}", wr=[sMV]))
    e(valu("v_lshlrev_b32", vV0, "1", tB))
    e(valu("v_xor_b32", vV0, vV0, l15))
    e(valu("v_lshl_add_u32", vV0, vV0, "4", tC))
    e(valu("v_xor_b32", vV1, "128", vV0))
    for s in range(0, pre_kv + 1):
        if s not in pro_k:
            for o_ in kdma(s): e(o_)
        if s < pre_kv:
            for o_ in vdma(s): e(o_)
    if pfcode and not pffirst: code_prefetch()
    e(salu("s_add_u32 s24, s10, s76")); e(salu("s_addc_u32 s25, s11, 0"))
    e(salu(f"s_mov_b32 s26, 98304")); e(salu(f"s_mov_b32 s27, 0x20000"))
    if tlb:
        e(valu("v_lshlrev_b32", lr_, "12", lane))
        for srd in [sV, sK, sQ] + ([sO] if tlb == 'all' else []):
            e(op(f"buffer_load_dword {rname(DUM + 4)}, {rname(lr_)}, {rname(srd,4)}, 0 offen offset:2048", 'vm_ld', rd=[lr_] + rng(srd, 4)))
    c = math.log2(math.e) / math.sqrt(128.0)
    e(salu(f"s_mov_b32 {rname(sScale)}, {f32bits(c):#x}", wr=[sScale]))
    e(salu(f"s_mov_b32 {rname(sMask)}, 0xffff0000", wr=[sMask]))
    e(salu(f"s_mov_b32 {rname(sNScale)}, {f32bits(-c):#x}", wr=[sNScale]))
    e(salu(f"s_mov_b32 {rname(sThr)}, {f32bits(2.0 ** thr_log2):#x}", wr=[sThr]))
    for k in range(pre_kv + 1, 16): tileoff(k)
    for t in late:
        if t not in pro_f: e(salu(f"s_add_u32 {rname(sQo[t])}, {rname(sQo[0])}, {t*16384}", wr=[sQo[t]]))
    if not pro_f: stg_setup()
    e(salu(f"s_mov_b32 s77, 272", wr=[S(77)]))
    e(valu("v_bfe_u32", lr_, lane, "2", "2"))
    e(valu("v_and_b32", lc, "3", lane))
    e(valu("v_mul_u32_u24", vRow, S(77), tB))
    e(valu("v_lshl_add_u32", vRow, l15, "4", vRow))
    e(valu("v_add_u32", vRow, sStg, vRow))
    e(valu("v_mul_u32_u24", vFo, S(77), l15))
    e(valu("v_add_u32", vFo, sStg, vFo))
    e(valu("v_lshl_add_u32", vFq, tB, "4", vFo))
    e(valu("v_lshl_add_u32", vFo, tB, "3", vFo))
    if o264:
        e(valu("v_lshlrev_b32", tC, "3", l15))
        e(valu("v_sub_u32", vFo, vFo, tC))
    e(valu("v_xor_b32", KR[0], tB, l15))
    e(valu("v_lshlrev_b32", KR[0], "4", KR[0]))
    e(valu("v_lshl_add_u32", KR[0], l15, "8", KR[0]))
    for ks in range(1, 4): e(valu("v_xor_b32", KR[ks], str(ks * 64), KR[0]))
    if 'f' in mode:
        for ks in range(4): e(valu("v_add_u32", vQr[ks], sStg, KR[ks]))
    e(valu("v_lshl_add_u32", tC, tB, "2", lr_))
    e(valu("v_lshlrev_b32", VR[0], "8", tC))
    e(valu("v_and_b32", tC, "7", tC))
    e(valu("v_lshl_add_u32", VR[0], tC, "5", VR[0]))
    e(valu("v_lshl_add_u32", VR[0], lc, "3", VR[0]))
    e(valu("v_add_u32", VR[0], str(VBASE), VR[0]))
    for dt in range(1, 8): e(valu("v_xor_b32", VR[dt], str(dt * 32), VR[0]))
    e(op(f"v_cmp_eq_u32 vcc, 0, {rname(lc)}", 'valu', rd=[lc], wr=[VCC]))
    e(valu("v_mov_b32", tC, "0x3f803f80"))
    e(op(f"v_cndmask_b32 {rname(tC)}, 0, {rname(tC)}, vcc", 'valu', rd=[tC, VCC], wr=[tC]))
    for r in range(4): e(valu("v_accvgpr_write_b32", ONES + r, tC))
    do_stamp('pro')
    if pfs: E.raw(op("s_waitcnt lgkmcnt(0)", 'wait'))
    def kfirst():
        E.wait_for(sum([Kd[s] for s in pro_k], []))
        x = op("s_barrier", 'bar'); E.raw(x); bars[0] = x
        Kreads[0] = [kread(0, f) for f in korder]
        for f in range(8): e(Kreads[0][f])
    if earlybar: kfirst()
    dpos = [0]
    for k, t in enumerate(early):
        for n_, o_ in enumerate(prescale_ops(t, k % 2, pk)):
            e(o_)
            if n_ % ((17 if q128 else 18) if pk else 22) == 0:
                nn = 0
                while nn < pro_dma and dpos[0] < len(dma) and 'after_bar' not in dma[dpos[0]].meta and all(a.done for a in dma[dpos[0]].meta.get('after', ())) and len(E.vm) < maxout:
                    x = dma[dpos[0]]; e(x); dpos[0] += 1; nn += x.kind != 'salu'
        rd = qfrag_reads(t, k % 2)
        if k < len(early) - 1 or True:
            for o_ in rd: e(o_)
    while not early and dpos[0] < len(dma) and 'after_bar' not in dma[dpos[0]].meta and all(a.done for a in dma[dpos[0]].meta.get('after', ())) and len(E.vm) < maxout:
        e(dma[dpos[0]]); dpos[0] += 1
    do_stamp('presc')
    if not earlybar: kfirst()

    heads = [0] * len(streams)
    tmp_owner = [None]
    TT = {T0, T1, T2, T3}
    def avail(o_, g):
        if o_.earliest > g: return False
        for a in o_.meta.get('after', ()):
            if not a.done: return False
        ab = o_.meta.get('after_bar')
        if ab is not None and ab not in bars: return False
        return True
    def tmp_ok(k, o_):
        return (not ((o_.rd | o_.wr) & TT)) or tmp_owner[0] in (None, k)
    def after_emit(k, o_):
        if not ((o_.rd | o_.wr) & TT): return
        tmp_owner[0] = k if (o_.wr & TT) else None
    MEMK = ('ds_r', 'ds_w', 'vm_ld', 'vm_dma', 'vm_st')
    live = list(range(len(streams)))
    def key(k):
        o_ = streams[k][heads[k]]; return (o_.deadline, getattr(o_, 'due', 0))
    def pick(g, mem, room=1000, only8=False):
        best = None
        for k in live:
            if heads[k] >= len(streams[k]): continue
            o_ = streams[k][heads[k]]
            if (o_.kind in MEMK) != mem or o_.cost > room or (only8 and o_.cost < 8): continue
            if not avail(o_, g) or not tmp_ok(k, o_) or not E.ready(o_): continue
            gm = o_.meta.get('gapmin')
            if gm and g < 10 ** 6 and g - lastg.get(gm[0], -100) < gm[1]: continue
            if best is None or key(k) < key(best): best = k
        return best
    lastg = {}; curg = [0]
    def take(k):
        o_ = streams[k][heads[k]]; heads[k] += 1
        if o_.meta.get('gapmin'): lastg[o_.meta['gapmin'][0]] = curg[0]
        if o_.kind == 'qwait':
            o_.done = True; return E.wait_for(o_.qops)
        c = E.emit(o_); after_emit(k, o_); return c
    def force(g):
        c = 0
        while True:
            cand = [k for k in live if heads[k] < len(streams[k]) and streams[k][heads[k]].deadline <= g]
            if not cand: return c
            ok = [k for k in cand if avail(streams[k][heads[k]], g) and tmp_ok(k, streams[k][heads[k]])]
            if not ok:
                ko = tmp_owner[0]
                if ko is None:
                    assert avail(dma[dpos[0]], g), dma[dpos[0]]
                    c += E.emit(dma[dpos[0]]); dpos[0] += 1; continue
                ok = [ko]
            rdy = [k for k in ok if E.ready(streams[k][heads[k]])]
            if not rdy and fillnop:
                k = pick(g - 1, False, 4)
                if k is not None: c += take(k); continue
            c += take(min(rdy or ok, key=key))
    gapcost = []
    stamp_gaps = {qk0[first_of_step[x]] for x in (stamp or ()) if isinstance(x, int)}
    carry = 0
    lastdma = [-100]; stepidx = {}
    for g in range(NM):
        curg[0] = g
        for s_ in range(NS):
            if g == qk0[first_of_step[s_]] + loopoff: stepidx[s_] = len(E.out)
        carry += force(g)
        while fillnop and E.need(M[g]) > 0:
            k = pick(g - 1, False, 4)
            if k is None or (streams[k][heads[k]].wr & M[g].rd): break
            carry += take(k)
        carry += E.emit(M[g]) - 8
        if g: gapcost.append(carry)
        if g == 0: do_stamp('m0')
        used = 0
        for o_ in pinned[g]: used += E.emit(o_)
        idle = pick(g, False) is None
        while dpos[0] < len(dma) and used + 4 <= budget and len(E.vm) < maxout and g - lastdma[0] >= (dgap if g > 60 else 1):
            o_ = dma[dpos[0]]
            if o_.kind == 'salu': break
            used += E.emit(o_); dpos[0] += 1; lastdma[0] = g
        while used < budget:
            k = pick(g, True, 16 if used == 0 else budget - used)
            if k is None: break
            used += take(k)
        for f in post[g]: used += f()
        if g in stamp_gaps: stamp.add('gap'); do_stamp('gap')
        for s_ in range(NS):
            if g == qk0[first_of_step[s_]]: do_spin(s_)
        if dpos[0] < len(dma) and dma[dpos[0]].kind == 'salu' and avail(dma[dpos[0]], g) and used + 4 <= budget:
            used += E.emit(dma[dpos[0]]); dpos[0] += 1
        while True:
            room = budget - used
            k = pick(g, False, room)
            if k is None: break
            o_ = streams[k][heads[k]]
            if room >= 8 and o_.cost < 8:
                k2 = pick(g, False, room, only8=True)
                if k2 is not None:
                    D = o_.deadline
                    if streams[k2][heads[k2]].deadline <= D: k = k2 if D - g > urg else k
                    elif D >= 100000: k = k2
                    else:
                        work = sum(x.cost for kk in live for x in streams[kk][heads[kk]:] if x.deadline <= D)
                        cap = sum(budget - sum(x.cost for x in pinned[gg]) - 4 * len(post[gg]) for gg in range(g + 1, min(D, NM)))
                        if cap - work >= safety: k = k2
            used += take(k)
        carry = used
        if g % 64 == 0: live = [k for k in live if heads[k] < len(streams[k])]
    assert dpos[0] == len(dma), (dpos[0], len(dma))
    do_stamp('mend')
    lastst = -100
    if tailopt: E.ldslat = 110
    while any(heads[k] < len(streams[k]) for k in live):
        k = pick(10 ** 6, True)
        if tailopt and k is not None and streams[k][heads[k]].kind == 'vm_st' and len(E.out) - lastst < tailopt:
            alt = [kk for kk in live if kk != k and heads[kk] < len(streams[kk]) and streams[kk][heads[kk]].kind != 'vm_st' and avail(streams[kk][heads[kk]], 10 ** 6)]
            if alt: k = min(alt, key=key)
        if k is None: k = pick(10 ** 6, False)
        if k is None:
            k = min([k for k in live if heads[k] < len(streams[k]) and avail(streams[k][heads[k]], 10 ** 6)], key=key)
        if streams[k][heads[k]].kind == 'vm_st': lastst = len(E.out)
        take(k)
    do_stamp('epi')
    est = sum(max(16, 8 + c) for c in gapcost)
    if 'prof' in dbg:
        for s in range(NS):
            a = qk0[first_of_step[s]]; b = qk0[first_of_step[s + 1]] if s + 1 < NS else NM - 1
            sys.stderr.write(f"  step {s}: gaps {b-a} over {sum(max(0, c - 8) for c in gapcost[a:b])} idle {sum(max(0, 8 - c) for c in gapcost[a:b])}\n")
    ntail = len(E.out) - max(k for k, i_ in enumerate(E.out) if i_.kind == 'mfma')
    sys.stderr.write(f"tail instrs {ntail} ")
    sys.stderr.write(f"steps {NS} gaps over budget: {sum(1 for c in gapcost if c > 8)}  est main cycles {est}  nops {E.nnop} instrs {len(E.out)} bars {len(bpos)}\n")

    if 'padnop' in dbg or 'padmfma' in dbg:
        e(salu("s_mov_b32 s74, 100"))
        E.nop(16)
        E.label("Lpad")
        if 'padnop' in dbg:
            for k in range(6): E.raw(op("s_nop 7", 'nop'))
        else:
            for k in range(12): E.raw(mfma16(SB[0] + 4 * (k % 4), KF + 4 * (k % 8), QF[k % 6] + 4 * (k % 4), SB[0] + 4 * (k % 4)))
        e(salu("s_sub_u32 s74, s74, 1")); e(salu("s_cmp_lg_u32 s74, 0")); e(salu("s_cbranch_scc1 Lpad"))
        E.nop(16)
    spin = [x for x in dbg if isinstance(x, int)]
    if spin:
        E.raw(op("s_waitcnt vmcnt(0) lgkmcnt(0)", 'wait'))
        E.label("Lspin")
        E.raw(op("s_memrealtime s[98:99]", 'smem')); E.raw(op("s_waitcnt lgkmcnt(0)", 'wait'))
        e(salu("s_sub_u32 s74, s98, s100")); e(salu(f"s_cmp_lt_u32 s74, {spin[0]}")); e(salu("s_cbranch_scc1 Lspin"))
    e(salu(f"s_or_b64 s[74:75], {rname(sFl[0],2)}, {rname(sFl[1],2)}", rd=rng(sFl[0], 4)))
    for t in range(2, NT): e(salu(f"s_or_b64 s[74:75], s[74:75], {rname(sFl[t],2)}", rd=rng(sFl[t], 2)))
    if slow: e(salu("s_cbranch_scc1 Lslow"))
    if stamp:
        E.raw(op("s_waitcnt vmcnt(0)", 'wait')); E.vm = []
        do_stamp('drain')
        e(salu(f"s_lshl_b32 s74, s2, 2")); e(salu(f"s_add_u32 s74, s74, {rname(sW)}")); e(salu("s_lshl_b32 s74, s74, 6", wr=[S(74)]))
        e(valu("v_mov_b32", V(40), S(74)))
        for k in range(nstamp[0] + 1):
            e(valu("v_mov_b32", V(42 + k), S(100) if k == 0 else S(80 + 2 * (k - 1))))
        e(salu("s_mov_b32 s68, s78")); e(salu("s_mov_b32 s69, s79")); e(salu("s_mov_b32 s70, 0x100000")); e(salu("s_mov_b32 s71, 0x20000"))
        for k in range(nstamp[0] + 1):
            E.raw(op(f"buffer_store_dword v{42+k}, v40, s[68:71], 0 offen offset:{4*k}", 'vm_st', rd=[V(40), V(42 + k)]))
    if stamp and 'dbgbuf' in stamp:
        while E.out[-1].text.startswith('buffer_store_dword v'): E.out.pop(); E.pos.pop()
        e(salu("s_mov_b32 s70, 256"))
        e(valu("v_mov_b32", V(40), "0"))
        n = nstamp[0]
        e(valu("v_not_b32", V(60), V(42)))
        for k in range(1, n + 1): e(valu("v_sub_u32", V(60 + k), V(42 + k), V(42)))
        e(salu("s_mov_b64 exec, 1")); E.nop(4)
        E.raw(op(f"buffer_atomic_umax v{42+n}, v40, s[68:71], 0 offen", 'vm_st'))
        E.raw(op(f"buffer_atomic_umax v60, v40, s[68:71], 0 offen offset:4", 'vm_st'))
        for k in range(1, n + 1): E.raw(op(f"buffer_atomic_umax v{60+k}, v40, s[68:71], 0 offen offset:{4+4*k}", 'vm_st'))
    E.label("Lend")
    E.raw(op("s_endpgm", 'end'))

    if slow:
        def fence():
            E.raw(op("s_waitcnt vmcnt(0) lgkmcnt(0)", 'wait')); E.vm = []; E.lgkm = []
            E.nop(16)
        E.label("Lslow")
        fence()
        sTl, sSo, sJ, sJ2, sJ3 = S(74), S(75), S(76), S(77), S(38)
        vKg, vS0, vS1, t_ = V(92), V(93), V(94), V(95)
        e(valu("v_lshrrev_b32", t_, "4", vLin))
        e(valu("v_and_b32", vKg, "15", t_)); e(valu("v_lshlrev_b32", vKg, "8", vKg))
        e(valu("v_lshrrev_b32", t_, "4", t_)); e(valu("v_lshl_add_u32", vKg, t_, "4", vKg))
        e(valu("v_subrev_u32", vS0, sMK, vV0)); e(valu("v_subrev_u32", vS1, sMK, vV1))
        e(salu(f"s_sub_u32 s77, {rname(sStg)}, {VBASE}", wr=[S(77)]))
        for dt in range(8): e(valu("v_add_u32", VR[dt], S(77), VR[dt]))
        if o264:
            for o_ in row2_setup(KR, 2): e(o_)
        e(salu(f"s_mov_b32 {rname(sTl)}, 0", wr=[sTl]))
        e(salu(f"s_mov_b32 {rname(sSo)}, {rname(sQo[0])}", wr=[sSo]))
        E.label("Lslow_tile")
        e(salu(f"s_cmp_eq_u64 {rname(sFl[0],2)}, 0"))
        e(salu("s_cbranch_scc1 Lslow_next"))
        for i in range(4): e(bload(LAND[1] + 4 * i, vLin, sQ, sSo, i * 1024))
        for o_ in prescale_ops(1, 0): e(o_)
        for o_ in qfrag_reads(0, 0): e(o_)
        e(valu("v_mov_b32", T2, "0xff800000"))
        e(salu(f"s_mov_b32 {rname(sJ)}, 0", wr=[sJ]))
        fence()
        sb = SB[0]
        def kloads():
            e(salu(f"s_add_u32 {rname(sJ2)}, {rname(sJ)}, 4096", wr=[sJ2]))
            for f in range(8): e(bload(KF + 4 * f, vKg, sK, (sJ, sJ2)[f // 4], (f % 4) * 64))
        def qk(c0):
            for kt in range(2):
                for ks in range(4): e(mfma16(sb + 4 * kt, KF + 4 * (4 * kt + ks), QF[0] + 4 * ks, sb + 4 * kt if ks else c0))
        E.label("Lslow_p1")
        kloads(); qk(None)
        for r in range(0, 8, 2): e(valu("v_max3_f32", T2, T2, sb + r, sb + r + 1))
        e(salu(f"s_add_u32 {rname(sJ)}, {rname(sJ)}, 8192", wr=[sJ]))
        fence()
        e(salu(f"s_cmp_lt_u32 {rname(sJ)}, 131072")); e(salu("s_cbranch_scc1 Lslow_p1"))
        for o_ in rowmax_finish(T2, T1): e(o_)
        e(valu("v_sub_f32", T2, "0", T2))
        for r in range(4): e(valu("v_mov_b32", NEG[0] + r, T2))
        for r in range(32): e(valu("v_mov_b32", O[2] + r, "0"))
        for r in range(4): e(valu("v_accvgpr_write_b32", LACC[0] + r, "0"))
        e(salu(f"s_mov_b32 {rname(sJ)}, 0", wr=[sJ]))
        fence()
        E.label("Lslow_p2")
        kloads()
        for hh in range(4):
            e(salu(f"s_add_u32 m0, {rname(sStg)}, {hh*2048}", wr=[M0]))
            e(salu(f"s_add_u32 {rname(sJ3)}, {rname(sJ)}, {hh*2048}", wr=[sJ3]))
            e(bdma(vS0, sV, sJ3, 0)); e(bdma(vS1, sV, sJ3, 1024))
        fence()
        for dt in range(8):
            for j in range(2): e(ds_readtr(VF + 4 * dt + 2 * j, VR[dt], j * 4096))
        qk(NEG[0])
        for r in range(8): e(valu("v_exp_f32", sb + r, sb + r, kind='trans'))
        for j in range(4): e(valu("v_cvt_pk_bf16_f32", sb + j, sb + 2 * j, sb + 2 * j + 1))
        e(mfma16(LACC[0], ONES, sb, LACC[0]))
        for dt in range(8): e(mfma16(O[2] + 4 * dt, VF + 4 * dt, sb, O[2] + 4 * dt))
        e(salu(f"s_add_u32 {rname(sJ)}, {rname(sJ)}, 8192", wr=[sJ]))
        fence()
        e(salu(f"s_cmp_lt_u32 {rname(sJ)}, 131072")); e(salu("s_cbranch_scc1 Lslow_p2"))
        for o_ in epilogue_head(0, T0, RC[0])[0]: e(o_)
        for o_ in epilogue_body(O[2], RC[0], sSo, 0, slow_=True)[0]: e(o_)
        fence()
        E.label("Lslow_next")
        for t in range(NT - 1): e(salu(f"s_mov_b64 {rname(sFl[t],2)}, {rname(sFl[t+1],2)}"))
        e(salu(f"s_add_u32 {rname(sSo)}, {rname(sSo)}, 16384", wr=[sSo]))
        e(salu(f"s_add_u32 {rname(sTl)}, {rname(sTl)}, 1", wr=[sTl]))
        e(salu(f"s_cmp_lt_u32 {rname(sTl)}, {NT}")); e(salu("s_cbranch_scc1 Lslow_tile"))
        E.raw(op("s_endpgm", 'end'))

    if loop:
        import re as _re
        s0, s1, P = loop
        blocks = [E.out[stepidx[s_]:stepidx[s_ + P]] for s_ in range(s0, s1, P)]
        tre = _re.compile(r"\], s(4\d|5[0-5]) offen")
        norm = lambda b: [tre.sub("], sT offen", i.text) for i in b]
        regs = lambda b: [int(m.group(1)) for i in b for m in [tre.search(i.text)] if m]
        for k_, b in enumerate(blocks[1:], 1):
            assert norm(b) == norm(blocks[0]), ("loop blocks differ", k_, [(x, y) for x, y in zip(norm(b), norm(blocks[0])) if x != y][:3], len(b), len(blocks[0]))
            assert regs(b) == [r + P * k_ for r in regs(blocks[0])], (regs(b), regs(blocks[0]))
        body = list(blocks[0])
        rs = sorted(set(regs(body)))
        later = {int(m.group(1)) for i in E.out[stepidx[s1]:] for m in [tre.search(i.text)] if m}
        assert not (set(rs) & later), (rs, later)
        for r in rs:
            last = max(k_ for k_, i in enumerate(body) if _re.search(rf"\], s{r} offen", i.text))
            k_ = last + 1; placed_ = False
            while k_ < len(body):
                while k_ < len(body) and body[k_].kind != 'mfma': k_ += 1
                e_ = k_ + 1
                while e_ < len(body) and body[e_].kind != 'mfma': e_ += 1
                if e_ < len(body) and sum(i.cost for i in body[k_ + 1:e_]) <= 4:
                    body.insert(e_, salu(f"s_add_u32 s{r}, s{r}, {P * 8192}")); placed_ = True; break
                k_ = e_
            if not placed_: body.append(salu(f"s_add_u32 s{r}, s{r}, {P * 8192}"))
        lab = Ins("Lsteady:", 'label', cost=0)
        fin = (rs[0] - 40 + P * len(blocks)) * 8192
        if lalign: lab = Ins(f".p2align {lalign}\nLsteady:", 'label', cost=0)
        body = [lab] + body + [salu(f"s_cmp_lg_u32 s{rs[0]}, {fin}"), salu("s_cbranch_scc1 Lsteady"), Ins("Lpost:", 'label', cost=0)]
        E.out = E.out[:stepidx[s0]] + body + E.out[stepidx[s1]:]
        sys.stderr.write(f"loop: {len(blocks)} x {len(body)} instrs, tail gap {[i.text[:20] for i in body[-5:]]}\n")
    def drop(i):
        if 'nobar' in dbg and i.kind == 'bar': return True
        if 'nodma' in dbg and i.kind == 'vm_dma': return True
        if 'novmw' in dbg and i.kind == 'wait' and 'vmcnt' in i.text and 'lgkm' not in i.text: return True
        if 'nods' in dbg and i.kind == 'ds_r': return True
        if 'nost' in dbg and i.kind == 'vm_st' and 'dwordx4' in i.text: return True
        if 'nodsw' in dbg and i.kind == 'ds_w': return True
        return False
    E.out = [i for i in E.out if not drop(i)]
    hdr = open("cdna_kernels/" + NAME + ".s.ref").read().split("\n")
    top = [l for l in hdr if l.startswith(";") and "@launch" not in l and not l.startswith("; Override") and not l.startswith("; grid=")]
    txt = "\n".join(top) + f"\n; @launch grid=(256,1,1) block=(256,1,1) lds={LDS}\n" + DOC
    txt += f""".amdgcn_target "amdgcn-amd-amdhsa--gfx950"
.text
.globl {NAME}_kernel
.p2align 8
.type {NAME}_kernel,@function
{NAME}_kernel:
""" + E.text() + f"""Lcode_end:
.section .rodata,"a"
.p2align 6
.amdhsa_kernel {NAME}_kernel
  .amdhsa_next_free_vgpr 512
  .amdhsa_next_free_sgpr 102
  .amdhsa_accum_offset 256
  .amdhsa_group_segment_fixed_size 0
  .amdhsa_kernarg_size 48
  .amdhsa_user_sgpr_count 2
  .amdhsa_user_sgpr_kernarg_segment_ptr 1
  .amdhsa_system_sgpr_workgroup_id_x 1
.end_amdhsa_kernel
"""
    return txt, LDS

from gen import META
def write(name, **kw):
    import subprocess
    txt, lds = build(**kw)
    open(name + ".s", "w").write(txt)
    open(name + ".full.s", "w").write(txt + META.format(n=NAME + "_kernel"))
    r = subprocess.run(["clang", "-x", "assembler", "-target", "amdgcn-amd-amdhsa", "-mcpu=gfx950", name + ".full.s", "-o", name + ".co"], capture_output=True, text=True)
    if r.returncode: print(r.stderr[:3000]); sys.exit(1)
    return lds

if __name__ == "__main__":
    print("lds", write("k2"))
```

```python
def V(n): return n
def A(n): return 256 + n
def S(n): return 1000 + n
M0 = 2000
VCC = 2001
def vr(n, c=1): return [V(n + i) for i in range(c)]
def ar(n, c=1): return [A(n + i) for i in range(c)]
def rname(r, c=1):
    if r < 256: p, n = 'v', r
    elif r < 512: p, n = 'a', r - 256
    else: p, n = 's', r - 1000
    return f"{p}{n}" if c == 1 else f"{p}[{n}:{n+c-1}]"
def rng(r, c): return list(range(r, r + c))

VALU_KINDS = ('valu', 'trans', 'perm', 'rfl')
class Ins:
    def __init__(s, text, kind, rd=(), wr=(), cost=None, **meta):
        s.text, s.kind, s.rd, s.wr = text, kind, set(rd), set(wr)
        s.cost = cost if cost is not None else (8 if kind in ('trans', 'mfma') else 4)
        s.meta = meta
        s.ws = 1
        s.earliest = meta.get('earliest', -1)
        s.deadline = meta.get('deadline', 1 << 30)
        s.done = False
    def __repr__(s): return s.text

def mfma(d, a, b, c):
    ct = '0' if c is None else rname(c, 16)
    i = Ins(f"v_mfma_f32_32x32x16_bf16 {rname(d,16)}, {rname(a,4)}, {rname(b,4)}, {ct}", 'mfma',
            rd=rng(a, 4) + rng(b, 4) + ([] if c is None else rng(c, 16)), wr=rng(d, 16))
    i.ab = set(rng(a, 4) + rng(b, 4)); i.c = c; i.d = d; i.n = 16; i.hz = (12, 10, 7)
    return i

def mfma16(d, a, b, c):
    ct = '0' if c is None else rname(c, 4)
    i = Ins(f"v_mfma_f32_16x16x32_bf16 {rname(d,4)}, {rname(a,4)}, {rname(b,4)}, {ct}", 'mfma',
            rd=rng(a, 4) + rng(b, 4) + ([] if c is None else rng(c, 4)), wr=rng(d, 4))
    i.ab = set(rng(a, 4) + rng(b, 4)); i.c = c; i.d = d; i.n = 4; i.hz = (8, 6, 3)
    return i

class Emitter:
    def __init__(s):
        s.out = []
        s.pos = []
        s.cur = 0
        s.lgkm = []
        s.vm = []
        s.nnop = 0
        s.window = 24
        s.cyc = 0
        s.mf = -100
        s.ldslat = 0
    def need(s, ins):
        n = 0
        k = len(s.out) - 1
        while k >= 0 and s.cur - s.pos[k] <= s.window:
            p = s.out[k]; gap = s.cur - s.pos[k] - p.ws
            req = 0
            pk, ck = p.kind, ins.kind
            if pk in VALU_KINDS:
                w = p.wr
                if ck == 'mfma' and (w & ins.rd): req = max(req, 2)
                if pk == 'trans' and ck != 'trans' and (w & ins.rd): req = max(req, 1)
                if ck == 'perm' and (w & ins.rd): req = max(req, 2)
                if ck == 'rfl' and (w & ins.rd): req = max(req, 1)
                sw = {r for r in w if r >= 1000}
                if sw & ins.rd:
                    if ck in VALU_KINDS: req = max(req, 2)
                    elif ck == 'salu': req = max(req, 4)
                    else: req = max(req, 5)
            if pk == 'mfma':
                w = p.wr
                h_rd, h_c, h_war = p.hz
                if ck == 'mfma':
                    same = ins.c == p.d and ins.n == p.n
                    if w & ins.ab: req = max(req, h_rd)
                    if ins.c is not None and (w & set(rng(ins.c, ins.n))) and not same: req = max(req, h_c)
                    if not same and (w & ins.wr): req = max(req, h_rd)
                elif w & (ins.rd | ins.wr): req = max(req, h_rd)
                if p.c is not None and ck != 'mfma' and (set(rng(p.c, p.n)) & ins.wr): req = max(req, h_war)
            if pk == 'salu' and M0 in p.wr and M0 in ins.rd and ck != 'salu': req = max(req, 1)
            if pk in ('vm_st', 'ds_w') and (p.meta.get('data', set()) & ins.wr): req = max(req, 2)
            n = max(n, req - gap)
            k -= 1
        return n
    def waits_needed(s, ins):
        res = []
        touch = ins.rd | ins.wr
        for q in (s.lgkm, s.vm):
            idx = -1
            for j, p in enumerate(q):
                if p.wr & touch: idx = j
            res.append(None if idx < 0 else len(q) - 1 - idx)
        return res
    def raw(s, ins):
        s.out.append(ins); s.pos.append(s.cur); s.cur += ins.ws; ins.done = True
        if ins.kind == 'mfma':
            s.cyc = max(s.cyc, s.mf + (16 if ins.n == 4 else 32)); s.mf = s.cyc
        ins.t = s.cyc; s.cyc += ins.cost
        if ins.kind in ('ds_r', 'ds_w'): s.lgkm.append(ins)
        if ins.kind in ('vm_ld', 'vm_dma', 'vm_st'): s.vm.append(ins)
    def nop(s, n):
        while n > 0:
            k = min(n, 8)
            i = Ins(f"s_nop {k-1}", 'nop', cost=4 * k); i.ws = k
            s.raw(i); n -= k; s.nnop += k
    def waitcnt(s, lg=None, vm=None):
        if lg is not None and lg >= len(s.lgkm): lg = None
        if vm is not None and vm >= len(s.vm): vm = None
        if lg is None and vm is None: return 0
        parts = []
        if vm is not None:
            vm = min(vm, 63)
            parts.append(f"vmcnt({vm})"); s.vm = s.vm[len(s.vm) - vm:] if vm else []
        if lg is not None:
            lg = min(lg, 15)
            parts.append(f"lgkmcnt({lg})"); s.lgkm = s.lgkm[len(s.lgkm) - lg:] if lg else []
        s.raw(Ins("s_waitcnt " + " ".join(parts), 'wait'))
        return 4
    def count_after(s, ops):
        lg = vm = None
        for op in ops:
            if op in s.lgkm:
                n = len(s.lgkm) - 1 - s.lgkm.index(op); lg = n if lg is None else min(lg, n)
            if op in s.vm:
                n = len(s.vm) - 1 - s.vm.index(op); vm = n if vm is None else min(vm, n)
        return lg, vm
    def wait_for(s, ops):
        for op in ops: assert op.done, op
        lg, vm = s.count_after(ops)
        return s.waitcnt(lg, vm)
    def ready(s, ins):
        if s.need(ins) > 0: return False
        lg, vm = s.waits_needed(ins)
        if lg is None and vm is None: return True
        if not ins.meta.get('may_wait', False): return False
        if lg is not None and s.cyc - s.lgkm[len(s.lgkm) - 1 - lg].t < s.ldslat: return False
        return True
    def emit(s, ins):
        c = 0
        lg, vm = s.waits_needed(ins)
        if lg is not None and lg > 15: lg = 15 if False else lg
        c += s.waitcnt(lg, vm)
        n = s.need(ins)
        if n > 0: s.nop(n); c += 4 * n
        s.raw(ins)
        return c + ins.cost
    def label(s, name):
        i = Ins(f"{name}:", 'label', cost=0); i.ws = 0; s.raw(i)
    def text(s):
        return "\n".join(("" if i.kind == 'label' else "    ") + i.text for i in s.out) + "\n"

def op(text, kind, rd=(), wr=(), **m): return Ins(text, kind, rd, wr, **m)
def salu(text, rd=(), wr=(), **m): return Ins(text, 'salu', rd, wr, **m)
def valu(name, d, *src, kind='valu', **m):
    t = f"{name} {rname(d)}, " + ", ".join(x if isinstance(x, str) else rname(x) for x in src)
    return Ins(t, kind, rd=[x for x in src if not isinstance(x, str)], wr=[d], **m)
def ds_read128(d, addr, off, **m): return Ins(f"ds_read_b128 {rname(d,4)}, {rname(addr)} offset:{off}", 'ds_r', rd=[addr], wr=rng(d, 4), **m)
def ds_readtr(d, addr, off, **m): return Ins(f"ds_read_b64_tr_b16 {rname(d,2)}, {rname(addr)} offset:{off}", 'ds_r', rd=[addr], wr=rng(d, 2), **m)
def ds_write128(addr, d, off, **m): return Ins(f"ds_write_b128 {rname(addr)}, {rname(d,4)} offset:{off}", 'ds_w', rd=[addr] + rng(d, 4), data=set(rng(d, 4)), cost=16, **m)
def ds_write64(addr, d, off, **m): return Ins(f"ds_write_b64 {rname(addr)}, {rname(d,2)} offset:{off}", 'ds_w', rd=[addr] + rng(d, 2), data=set(rng(d, 2)), cost=8, **m)
def bload(d, voff, srd, soff, off, flags="", **m):
    so = '0' if soff is None else rname(soff)
    return Ins(f"buffer_load_dwordx4 {rname(d,4)}, {rname(voff)}, {rname(srd,4)}, {so} offen offset:{off}{flags}", 'vm_ld',
               rd=[voff] + rng(srd, 4) + ([] if soff is None else [soff]), wr=rng(d, 4), **m)
def bdma(voff, srd, soff, off, flags="", **m):
    so = '0' if soff is None else rname(soff)
    return Ins(f"buffer_load_dwordx4 {rname(voff)}, {rname(srd,4)}, {so} offen offset:{off}{flags} lds", 'vm_dma',
               rd=[voff, M0] + rng(srd, 4) + ([] if soff is None else [soff]), **m)
def bstore(d, voff, srd, soff, off, flags="", **m):
    so = '0' if soff is None else rname(soff)
    return Ins(f"buffer_store_dwordx4 {rname(d,4)}, {rname(voff)}, {rname(srd,4)}, {so} offen offset:{off}{flags}", 'vm_st',
               rd=[voff] + rng(d, 4) + rng(srd, 4) + ([] if soff is None else [soff]), data=set(rng(d, 4)), cost=16, **m)

def ds_read2_64(d, addr, off8, **m):
    return Ins(f"ds_read2_b64 {rname(d,4)}, {rname(addr)} offset0:{off8} offset1:{off8+1}", 'ds_r', rd=[addr], wr=rng(d, 4), **m)

def ds_write_at(d, off, **m):
    return Ins(f"ds_write_addtid_b32 {rname(d)} offset:{off}", 'ds_w', rd=[d, M0], data={d}, cost=5, **m)
def ds_read2_32(d, addr, o0, o1, **m):
    return Ins(f"ds_read2_b32 {rname(d,2)}, {rname(addr)} offset0:{o0} offset1:{o1}", 'ds_r', rd=[addr], wr=rng(d, 2), **m)
```

```python
import sys, math, struct
from asmlib import *

NAME = "standalone__gqa_softmax__near_ridge"
def f32bits(x): return struct.unpack("<I", struct.pack("<f", x))[0]

DOC = """;
;    16-row subtiles that start (and finish) staggered, walking the 16 key tiles of 32 cyclically.
;  * S^T = K Q^T and O^T = V^T P^T with v_mfma_f32_16x16x32_bf16, so P goes from accumulator to B operand in-lane;
;    ds_read_b64_tr_b16; the first four key tiles stay resident for the wrap-around steps.
;    max (two passes over all 512 keys).
"""

def build(d=(0, 0, 4, 4, 8, 8), RK=6, RV=5, lag=2, stamp=None, qpos=None, pre_kv=1, budget=8, st_flags=" nt", ld_flags=" nt",
          q_flags=" nt", pfcode=True, slow=True, thr_log2=30, rot=0, dbg=(), plead=70, bar_every=1, vlast=False, urg=2, espan=100, pro_dma=2, spread=True, qmix=2, maxout=10, dgap=4, mode='cccccc', pk=False, ksmaj=False, earlybar=False, sfine=None, qlead=None, tlb='', ldslat=180, fillnop=True, tight=True, o264=False, stgap=0, wgap=0, st_last=None, bar_end=1, wcost=8, scost=16, pair=True, oddfirst=False, margin=7, fmalead=3, safety=16, nres=0, nqslot=4, onelate=True, pkall=False, chunkgap=20, split01=False, loop=None, loopoff=0, pfn=3, lalign=0, pffirst=False, pf_flags='', pfs=False, pf2=None, tailopt=0, shadow=0, wlast=False, pchunk=False, q128=False, oat=False, wbatch=1):
    E = Emitter()
    NT = 6
    E.ldslat = ldslat
    vLin, vK0, vK1, vV0, vV1, vRow, vFq, vFo = [V(i) for i in range(1, 9)]
    KR = [V(9 + i) for i in range(4)]
    VR = [V(13 + i) for i in range(8)]
    T0, T1, T2, T3 = V(22), V(23), V(24), V(25)
    ET = V(28)
    NB = 4 if pair else lag + 1
    SB = [V(36 + 8 * i) for i in range(4)]
    NEG = [V(68 + 4 * j) for j in range(NT)]
    RC = [NEG[j] + 1 for j in range(NT)]
    vQd = [V(92), V(93), V(94), V(95)]
    vQr = [V(0), V(21), V(26), V(27)]
    O = [A(0)] + [V(96 + 32 * j) for j in range(5)]
    QF = [A(32 + 16 * j) for j in range(NT)]
    KF, VF = A(128), A(160)
    LACC = [A(192 + 4 * j) for j in range(NT)]
    ONES = A(216)
    DUM = A(220)
    LAND = [O[5] + 16] + [O[j] for j in range(1, 6)]
    sQ, sK, sV, sO, sC = S(12), S(16), S(20), S(24), S(28)
    sW, sMK, sMV, sScale, sMask = S(32), S(33), S(34), S(35), S(36)
    sT = [S(40 + i) for i in range(16)]
    sQo = [S(56 + j) for j in range(NT)]
    sFl = [S(62 + 2 * j) for j in range(NT)]
    sStg = S(39); sNScale = S(37); sThr = S(3)
    STGW, STGH = {4: 16896, 3: 12800, 2: 8704}[nqslot], 4352
    SLOT = [0, 4352, 8704, 12800]
    if oat:
        STG = 0; KBASE = 4 * STGW; VBASE = KBASE + RK * 8192; LDS = VBASE + RV * 8192
    else:
        KBASE, VBASE = 0, RK * 8192
        STG = VBASE + RV * 8192
        LDS = STG + 4 * STGW
    assert RK * 8192 <= 65536 and LDS <= 163840
    nstamp = [0]
    def do_spin(name):
        for x in dbg:
            if isinstance(x, tuple) and x[1] == name:
                E.label("Lspin2")
                E.raw(op("s_memrealtime s[98:99]", 'smem')); E.raw(op("s_waitcnt lgkmcnt(0)", 'wait')); E.lgkm = []
                E.raw(salu("s_sub_u32 s74, s98, s100")); E.raw(salu(f"s_cmp_lt_u32 s74, {x[2]}")); E.raw(salu("s_cbranch_scc1 Lspin2"))
    def do_stamp(name='x'):
        do_spin(name)
        if not stamp or name not in stamp: return
        k = nstamp[0]; nstamp[0] += 1
        if 'both' in stamp:
            E.raw(op(f"s_memtime s[{80+2*k}:{81+2*k}]", 'smem')); k += 1; nstamp[0] += 1
        assert k < 10
        E.raw(op(f"{'s_memtime' if 'cyc' in stamp else 's_memrealtime'} s[{80+2*k}:{81+2*k}]", 'smem'))
        E.raw(op("s_waitcnt lgkmcnt(0)", 'wait')); E.lgkm = []

    NS = max(d) + 16
    U = [(s, t) for s in range(NS) for t in range(NT) if d[t] <= s < d[t] + 16]
    NU = len(U); assert NU == 96
    qk0 = {}; pv0 = {}; pvp = {}; pos = 0
    if pair:
        G = []
        for s in range(NS):
            us = [i for i, u in enumerate(U) if u[0] == s]
            if len(us) % 2 and oddfirst: G.append(us[:1]); us = us[1:]
            G += [us[k:k + 2] for k in range(0, len(us), 2)]
        glag = 1
    else:
        G = [[i] for i in range(NU)]; glag = lag
    def put_qk(g_):
        nonlocal pos
        for i in g_: qk0[i] = pos; pos += 8
    def put_pv(g_):
        nonlocal pos
        for i in g_: pvp[i] = [None] * 9
        for i in g_: pvp[i][0] = pos; pos += 1
        for dt in range(8):
            for i in (g_ if dt % 2 == 0 else g_[::-1]): pvp[i][1 + dt] = pos; pos += 1
        for i in g_: pv0[i] = pvp[i][0]
    for k in range(glag): put_qk(G[k])
    for k in range(len(G)):
        if k + glag < len(G): put_qk(G[k + glag])
        put_pv(G[k])
    NM = pos
    grp_of = {i: g_ for g_ in G for i in g_}
    first_of_step = {}; last_of_step = {}; first_of_tile = {}; last_of_tile = {}
    for i, (s, t) in enumerate(U):
        first_of_step.setdefault(s, i); last_of_step[s] = i
        first_of_tile.setdefault(t, i); last_of_tile[t] = i
    def cinit(i):
        f = first_of_tile[U[i][1]]
        return mode[U[i][1]] == 'c' and i > f and qk0[i] - (qk0[f] + 8) >= 14
    M = [None] * NM
    for i, (s, t) in enumerate(U):
        sb = SB[i % NB]
        for kt in range(2):
            for ks in range(4):
                c = sb + 4 * kt if ks else (NEG[t] if cinit(i) else None)
                M[qk0[i] + (2 * ks + kt if ksmaj else 4 * kt + ks)] = mfma16(sb + 4 * kt, KF + 4 * (4 * kt + ks), QF[t] + 4 * ks, c)
        fst = i == first_of_tile[t]
        M[pvp[i][0]] = mfma16(LACC[t], ONES, sb, None if fst else LACC[t])
        for dt in range(8):
            o = O[t] + 4 * dt
            M[pvp[i][1 + dt]] = mfma16(o, VF + 4 * dt, sb, None if fst else o)
    assert all(m is not None for m in M)

    def mkslots(R):
        sl = {}; prev = {}; c = 0; owner = {}
        for s in range(NS):
            if s % 16 < nres: sl[s] = s % 16
            else:
                sl[s] = nres + c % (R - nres); c += 1
                if sl[s] in owner: prev[s] = owner[sl[s]]
                owner[sl[s]] = s
        return sl, prev
    slK, prevK = mkslots(RK); slV, prevV = mkslots(RV)
    resident = lambda s: s >= 16 and s % 16 < nres
    korder = [4 * (n % 2) + n // 2 for n in range(8)] if ksmaj else list(range(8))
    def kread(s, f): return ds_read128(KF + 4 * f, KR[f % 4], slK[s] * 8192 + (f // 4) * 4096)
    def vread(s, dt, j): return ds_readtr(VF + 4 * dt + 2 * j, VR[dt], slV[s] * 8192 + j * 4096)
    pinned = [[] for _ in range(NM)]
    post = [[] for _ in range(NM)]
    Kreads = {}; Vreads = {}; posr = {}; posw = {}
    lastr = {}; firstuse = {('V', 0): min(pvp[k][1] for k in G[0])}
    for s in range(1, NS):
        i = last_of_step[s - 1]
        Kreads[s] = [kread(s, f) for f in korder]
        wide = spread and qk0[first_of_step[s]] - qk0[i] >= 17
        W = qk0[first_of_step[s]] - qk0[i]
        kp = [max(f, (f * (W - margin)) // 7) for f in range(8)] if wide else list(range(8))
        if split01 and s == 1: kp = [max(1, x) for x in kp]
        for f in range(8): pinned[qk0[i] + kp[f]].append(Kreads[s][f])
        posr['K', s] = qk0[i] + kp[0]; lastr['K', s] = qk0[i] + kp[-1]
        Vreads[s] = []
        lu = [max(pvp[k][1 + dt] for k in grp_of[i]) for dt in range(8)]
        nu = min(pvp[k][1] for k in grp_of[first_of_step[s]])
        wide = spread and nu - lu[0] >= 17
        pp = lu[0] - 1; vpos = []
        for dt in range(8):
            for j in range(2):
                n_ = 2 * dt + j
                pp = max(lu[dt], lu[0] + (n_ * (nu - lu[0] - margin + 1)) // 15) if wide else lu[dt]
                vpos.append(pp)
                r = vread(s, dt, j); Vreads[s].append(r); pinned[pp].append(r)
        posr['V', s] = vpos[0]; lastr['V', s] = vpos[-1]; firstuse['V', s] = nu
    Vreads[0] = []
    v0pos = firstuse['V', 0] - 11
    for dt in range(8):
        for j in range(2):
            r = vread(0, dt, j); Vreads[0].append(r); pinned[v0pos + dt].append(r)
    posr['V', 0] = v0pos; lastr['V', 0] = v0pos + 7
    def addwait(key, rds, g):
        h = len(rds) // 2
        if lastr[key] + 3 <= g - 1:
            posw[key] = g - 1; post[g - 1].append(lambda: E.wait_for(rds))
        elif lastr[key] + 3 <= g + 3 and not (pair and key[0] == 'V'):
            post[g - 1].append(lambda: E.wait_for(rds[:h]))
            posw[key] = g + 3; post[g + 3].append(lambda: E.wait_for(rds))
        else: posw[key] = g + (17 if key[0] == 'V' else 7)
    for s in range(NS):
        if s >= 1: addwait(('K', s), Kreads[s], qk0[first_of_step[s]])
        else: posw['K', 0] = 7
        addwait(('V', s), Vreads[s], firstuse['V', s])
    bpos = [-1]; needpos = {}
    if sfine is None:
        cand = sorted({qk0[first_of_step[s]] - 1 for s in range(1, NS) if s % bar_every == 0 or s <= 2} | {v0pos - 1})
    else:
        cand = set()
        for (kind, s), p_ in posr.items():
            if s <= sfine or (kind == 'K' and ((s - sfine) % (bar_every if s <= 16 else bar_end) == 0)): cand.add(p_ - 1)
        if ('K', NS) not in posr and NS - 1 > sfine: pass
        cand = sorted(c_ for c_ in cand if c_ >= 0)
        if nres:
            keep = set()
            lateks = [k_ for k_ in posr if k_[1] >= 16 and not resident(k_[1])]
            if lateks and onelate:
                pl_ = min(posr[k_] for k_ in lateks)
                for k_ in lateks: needpos[k_] = pl_
            for key_, p_ in posr.items():
                if not resident(key_[1]): keep.add(max([-1] + [c_ for c_ in cand if c_ < needpos.get(key_, p_)]))
            cand = [c_ for c_ in cand if c_ in keep]
    bpos += cand
    need_at = {b: [] for b in range(len(bpos))}
    need_at[0].append(('K', 0))
    for key, p in posr.items():
        if resident(key[1]): continue
        b = max(k for k in range(len(bpos)) if bpos[k] < needpos.get(key, p))
        need_at[b].append(key)
    def release(key):
        return min(k for k in range(len(bpos)) if bpos[k] >= posw[key])

    bars = {}
    Kd = {}; Vd = {}; Qd = {}
    def kdma(s):
        ops = [salu(f"s_add_u32 m0, {rname(sMK)}, {slK[s] * 8192}", rd=[sMK], wr=[M0]),
               bdma(vK0, sK, sT[s % 16], 0, ld_flags), bdma(vK1, sK, sT[s % 16], 1024, ld_flags)]
        if s in prevK: ops[0].meta['after_bar'] = release(('K', prevK[s]))
        Kd[s] = ops[1:]; return ops
    def vdma(s):
        ops = [salu(f"s_add_u32 m0, {rname(sMV)}, {slV[s] * 8192}", rd=[sMV], wr=[M0]),
               bdma(vV0, sV, sT[s % 16], 0, ld_flags), bdma(vV1, sV, sT[s % 16], 1024, ld_flags)]
        if s in prevV: ops[0].meta['after_bar'] = release(('V', prevV[s]))
        Vd[s] = ops[1:]; return ops
    qhalf = {}
    def qld(t):
        if mode[t] == 'f':
            ops = [salu(f"s_add_u32 m0, {rname(sStg)}, {SLOT[qhalf[t]]}", rd=[sStg], wr=[M0])]
            ops += [bdma(vQd[i], sQ, sQo[t], i * 1024, q_flags) for i in range(4)]
            Qd[t] = ops; return [ops]
        ops = [bload(LAND[t] + 4 * i, vLin, sQ, sQo[t], i * 1024, q_flags) for i in range(4)]
        Qd[t] = ops; return [[o_] for o_ in ops]
    early = [t for t in range(NT) if d[t] == 0 and mode[t] == 'c' and not (split01 and t)]
    late = [t for t in range(NT) if t not in early]
    pro_f = [t for t in late if d[t] == 0]
    users = []
    for t in late: users.append((qk0[first_of_tile[t]] - 30, 'q', t))
    for t in range(NT): users.append((pv0[last_of_tile[t]] + 1, 'o', t))
    users.sort()
    nearly = len(early)
    for k, t in enumerate(early): qhalf[t] = k % 2
    uhalf = {}; nf = 0; nh = nearly
    for k, (_, kind, t) in enumerate(users):
        if kind == 'q' and mode[t] == 'f': uhalf[k] = (2 + nf) % nqslot; nf += 1
        else: uhalf[k] = nh % 2; nh += 1
        if kind == 'q': qhalf[t] = uhalf[k]
    if qpos is None: qpos = [max(1, d[t] - 2) for t in range(NT)]
    order = sorted([(posr[k], k) for k in posr if not resident(k[1])])
    dma = []
    placed = set(); qq = []
    if qlead is not None:
        ql = qlead if isinstance(qlead, (list, tuple)) else [qlead] * NT
        order = sorted(order + [(qk0[first_of_tile[t]] - ql[t], ('Q', t)) for t in late])
    for p, (kind, s) in order:
        if kind == 'Q':
            grps = qld(s)
            if s not in pro_f:
                for grp in grps: dma += grp
            placed.add(s); continue
        if kind == 'V' and qlead is None:
            for t in late:
                if qpos[t] <= s and t not in placed: qq += qld(t); placed.add(t)
        if not ((kind == 'K' and s <= pre_kv) or (kind == 'V' and s < pre_kv)):
            dma += kdma(s) if kind == 'K' else vdma(s)
        nq = 0
        while qq and nq < qmix:
            grp = qq.pop(0); dma += grp; nq += len(grp)
    assert placed == set(late) and not qq

    streams = []
    def prescale_ops(t, half, packed=False):
        ops = []
        for i in range(4):
            for j in range(4):
                x = LAND[t] + 4 * i + j
                a, b = (T0, T1) if j % 2 == 0 else (T2, T3)
                ops.append(valu("v_lshlrev_b32", a, "16", x, may_wait=True))
                ops.append(valu("v_and_b32", b, sMask, x))
                if packed:
                    ops.append(op(f"v_pk_mul_f32 {rname(a,2)}, {rname(a,2)}, {rname(sMV - 0,2)} op_sel:[0,1] op_sel_hi:[1,1]", 'valu', rd=[a, b, sScale], wr=[a, b]))
                else:
                    ops.append(valu("v_mul_f32", a, sScale, a))
                    ops.append(valu("v_mul_f32", b, sScale, b))
                ops.append(valu("v_cvt_pk_bf16_f32", x, a, b))
                if q128 and packed:
                    if j == 3: ops.append(ds_write128(vRow, x - 3, half * STGH + i * 1088))
                elif j % 2: ops.append(ds_write64(vRow, x - 1, half * STGH + i * 1088 + (j - 1) * 4))
        return ops
    def qfrag_reads(t, half, dst=None): return [ds_read128((dst or QF[t]) + 4 * ks, vFq, half * STGH + ks * 64) for ks in range(4)]
    def swap(kind, a, b): return op(f"v_permlane{kind}_swap_b32 {rname(a)}, {rname(b)}", 'perm', rd=[a, b], wr=[a, b])
    def rowmax_finish(x, y):
        return [valu("v_mov_b32", y, x), swap(32, x, y), valu("v_max_f32", x, x, y),
                valu("v_mov_b32", y, x), swap(16, x, y), valu("v_max_f32", x, x, y)]

    for i, (s, t) in enumerate(U):
        sb = SB[i % NB]; ops = []
        fst = i == first_of_tile[t]
        dl = pv0[i] if not (split01 and i == 0) else 8
        if fst:
            ops = [valu("v_max3_f32", T0, sb, sb + 1, sb + 2), valu("v_max3_f32", T1, sb + 3, sb + 4, sb + 5),
                   valu("v_max3_f32", T0, T0, sb + 6, sb + 7), valu("v_max_f32", T0, T0, T1)] + rowmax_finish(T0, T1)
            if mode[t] == 'f':
                ops.append(valu("v_mul_f32", NEG[t], sNScale, T0))
                for k_, o_ in enumerate(ops): o_.deadline = dl; o_.earliest = qk0[i] + 7; o_.due = -1
                negdone = ops[-1]
            else:
                ops.append(valu("v_sub_f32", NEG[t], "0", T0))
                nxt = [k for k in range(i + 1, NU) if U[k][1] == t and cinit(k)][0]
                for k_, o_ in enumerate(ops): o_.deadline = min(dl, qk0[nxt] - 1); o_.earliest = qk0[i] + 7; o_.due = -1
                negdone = ops[-1]
                mv = [valu("v_mov_b32", NEG[t] + r, NEG[t], deadline=qk0[nxt] - 1, after=[negdone]) for r in range(1, 4)]
                streams.append(mv)
            build.neg = getattr(build, 'neg', {}); build.neg[t] = negdone
        As = []; Es = []; Fs = []
        for j in range(4):
            a, b = sb + 2 * j, sb + 2 * j + 1
            pre_ = []
            if mode[t] == 'f':
                pre_ = [valu("v_fma_f32", a, a, sScale, NEG[t], after=[build.neg[t]]), valu("v_fma_f32", b, b, sScale, NEG[t])]
            elif not cinit(i):
                pre_ = [valu("v_add_f32", a, NEG[t], a, after=[build.neg[t]]), valu("v_add_f32", b, NEG[t], b)]
            ea, eb = valu("v_exp_f32", a, a, kind='trans'), valu("v_exp_f32", b, b, kind='trans')
            if pre_: ea.meta['after'] = [pre_[0]]; eb.meta['after'] = [pre_[1]]
            for k_, o_ in enumerate(pre_ + [ea, eb]):
                o_.deadline = dl; o_.earliest = qk0[i] + ((6 if ksmaj else 3) if j < 2 else 7)
                o_.due = 2 * j + 0.01 * k_ - (fmalead if o_ in pre_ else 0)
            As += pre_; Es += [ea, eb]
            cv = valu("v_cvt_pk_bf16_f32", sb + j, a, b, after=[ea, eb]); cv.deadline = dl; cv.due = 2 * j + 1.5
            Fs.append(cv)
        streams.append(ops + As); streams.append(Es); streams.append(Fs)

    def epilogue_head(t, l, rc):
        thr = f32bits(2.0 ** thr_log2)
        return [valu("v_accvgpr_read_b32", l, LACC[t]), valu("v_rcp_f32", rc, l, kind='trans')], \
               [op(f"v_cmp_nge_f32 {rname(sFl[t],2)}, {rname(sThr)}, {rname(l)}", 'valu', rd=[l, sThr], wr=rng(sFl[t], 2))]
    vRow2 = [V(92), V(93), V(94), V(95)]
    def row2_setup(dst, n):
        return [valu("v_lshrrev_b32", dst[1], "8", vLin), valu("v_lshlrev_b32", dst[1], "3", dst[1]), valu("v_sub_u32", dst[0], vRow, dst[1])] + \
               [valu("v_add_u32", dst[k_], str((k_ // 2) * STGH + (k_ % 2) * 2112), dst[0]) for k_ in range(1, n)]
    def epilogue_body(o, rc, soff, half, early_=None, packed=False, fl_=None, slow_=False, nplain=0):
        fl_ = st_flags if fl_ is None else fl_
        use264 = o264
        r2 = KR if slow_ else vRow2
        ops = []; wr = []; pend = []
        for dt in range(8):
            src = o + 4 * dt
            grp = []
            if src >= 256:
                x = ET + 4 * (dt % 2)
                for r in range(4): grp.append(valu("v_accvgpr_read_b32", x + r, src + r))
            else: x = src
            if packed and dt >= nplain:
                for r in (0, 2): grp.append(op(f"v_pk_mul_f32 {rname(x+r,2)}, {rname(x+r,2)}, {rname(rc-1,2)} op_sel:[0,1] op_sel_hi:[1,1]", 'valu', rd=[x+r, x+r+1, rc], wr=[x+r, x+r+1]))
            else:
                for r in range(4): grp.append(valu("v_mul_f32", x + r, rc, x + r))
            grp.append(valu("v_cvt_pk_bf16_f32", x, x, x + 1))
            grp.append(valu("v_cvt_pk_bf16_f32", x + 1, x + 2, x + 3))
            if oat and not slow_: ws_ = [ds_write_at(x + p_, half * STGH + (2 * dt + p_) * 260) for p_ in range(2)]
            else:
                ws_ = [ds_write64(vFo, x, half * STGH + dt * 32)]; ws_[0].cost = wcost; ws_[0].meta['gapmin'] = ('w', wgap)
            wr += ws_; pend += ws_
            nb_ = 1 if slow_ else (wbatch if src < 256 else min(wbatch, 2))
            if (dt + 1) % nb_ == 0: grp += pend; pend = []
            if early_ is not None:
                for o_ in grp: o_.earliest = early_[dt]
            ops += grp
        if wlast and o < 256 and not slow_: ops = [o_ for o_ in ops if o_.kind != 'ds_w'] + wr
        if oat and not slow_:
            rds = [ds_read2_32(o + 4 * i + 2 * gg, vRow2[half], 4 * i + 16 * gg, 4 * i + 16 * gg + 65) for i in range(4) for gg in range(2)]
        elif use264: rds = [ds_read2_64(o + 4 * i, r2[2 * half + i // 2], (i % 2) * 132) for i in range(4)]
        else: rds = [ds_read128(o + 4 * i, vRow, half * STGH + i * 1088) for i in range(4)]
        sts = [bstore(o + 4 * i, vLin, sO, soff, i * 1024, fl_, may_wait=True) for i in range(4)]
        for o_ in sts: o_.cost = scost; o_.meta['gapmin'] = ('s', stgap)
        return ops + rds + sts, wr, rds

    epiw = {}
    qdone = lambda t: M[qk0[first_of_tile[t]] + 7]
    lastrd = {k % 2: qdone(t) for k, t in enumerate(early)}
    for k, (_, kind, t) in enumerate(users):
        half = uhalf[k]
        if kind == 'q' and mode[t] == 'f':
            rd = [ds_read128(QF[t] + 4 * ks, vQr[ks], SLOT[half]) for ks in range(4)]
            dl = max(0, qk0[first_of_tile[t]] - 4)
            w = Ins("(wait q)", 'qwait', cost=4); w.qops = Qd[t][1:]; w.meta['after'] = [Qd[t][-1]]
            for o_ in [w] + rd: o_.deadline = dl; o_.earliest = dl - 6
            firstw = Qd[t][0]; lr = qdone(t)
            streams.append([w] + rd)
        elif kind == 'q':
            ops = prescale_ops(t, half, pk and (t in pro_f or pchunk)); rd = qfrag_reads(t, half)
            dl = qk0[first_of_tile[t]] - 4
            pl = plead[t] if isinstance(plead, (list, tuple)) else plead
            if t in pro_f: dl += 4; pl = 0
            if pchunk: pl = 0
            for o_ in ops + rd: o_.deadline = dl; o_.earliest = dl - pl; o_.due = 100
            ops[0].meta['after'] = [Qd[t][-1]]
            firstw = [o_ for o_ in ops if o_.kind == 'ds_w'][0]; lr = qdone(t)
            streams.append(ops + rd)
        else:
            i = last_of_tile[t]
            l = NEG[t] + 2
            h1, h2 = epilogue_head(t, l, RC[t])
            for o_ in h1 + h2: o_.earliest = pv0[i]
            fin = i in G[-1]
            b, wr, rds = epilogue_body(O[t], RC[t], sQo[t], half, nplain=(shadow if fin else 0), early_=(pvp[i][1:1 + shadow] + [NM] * (8 - shadow) if (pk and fin) else pvp[i][1:]), packed=(pk and (fin or pkall)), fl_=(st_last if (st_last is not None and i == NU - 1) else None))
            ops = h1 + h2 + b
            for n_, o_ in enumerate(ops):
                dl_ = pv0[i] + 14 + (n_ * espan) // len(ops)
                o_.deadline = dl_ if dl_ < NM - 1 else 100000 + k
            if fin:
                for o_ in b: o_.deadline = 100000 + k
            if pkall and not fin:
                nb = len(b) - len(rds) - 4
                c0 = max(pvp[k_][8] for k_ in grp_of[i]) + 6 + chunkgap * (grp_of[i].index(i))
                for n_, o_ in enumerate(b[:nb]):
                    o_.earliest = o_.deadline = min(c0, NM)
                    if c0 >= NM - 1: o_.deadline = 100000 + k
                for n_, o_ in enumerate(h1 + h2): o_.deadline = min(o_.deadline, c0 - 1)
                for n_, o_ in enumerate(b[nb:]):
                    dl_ = c0 + 4 + (6 * n_ if not oat else (3 * n_ if n_ < 8 else 6 * n_ - 24))
                    o_.deadline = dl_ if dl_ < NM - 1 else 100000 + k
            firstw = wr[0]; lr = rds[-1]; epiw[t] = firstw
            streams.append(ops)
        if half in lastrd: firstw.meta.setdefault('after', []).append(lastrd[half])
        lastrd[half] = lr

    if pf2 is not None:
        x = bload(DUM, vLin, sC, S(38), 0); x.wr = set(); x.earliest = qk0[first_of_step[pf2]]; x.deadline = x.earliest + 30
        streams.append([x])
    if oat:
        a_, b_ = vRow2[0], vRow2[1]
        ops = [valu("v_bfe_u32", a_, vLin, "5", "3"), valu("v_mul_u32_u24", a_, "520", a_),
               valu("v_bfe_u32", b_, vLin, "4", "1"), valu("v_lshl_add_u32", a_, b_, "7", a_),
               valu("v_lshrrev_b32", b_, "8", vLin), valu("v_lshl_add_u32", a_, b_, "2", a_),
               valu("v_add_u32", a_, sStg, a_), valu("v_add_u32", b_, str(STGH), a_),
               salu(f"s_mov_b32 m0, {rname(sStg)}", rd=[sStg], wr=[M0], after=[dma[-1]])]
        ops[0].meta['after'] = [Qd[t][-1] for t in late]
        for o_ in ops: o_.deadline = qk0[first_of_step[15]] + 40; o_.earliest = qk0[first_of_step[15]]
        streams.append(ops)
        for t in range(NT): epiw[t].meta.setdefault('after', []).append(ops[-1])
    if o264:
        ops = row2_setup(vRow2, 4)
        lastq = max(late, key=lambda t: qk0[first_of_tile[t]])
        ops[0].meta['after'] = [Qd[t][-1] for t in late]
        for o_ in ops: o_.deadline = qk0[first_of_step[15]] + 40; o_.earliest = qk0[first_of_step[15]]
        streams.append(ops)
    def mkbar(b):
        def f():
            ops = []
            for kind, x in need_at[b]: ops += (Kd if kind == 'K' else Vd)[x]
            c = 0
            while not all(o_.done for o_ in ops):
                assert avail(dma[dpos[0]], 10 ** 6), dma[dpos[0]]
                c += E.emit(dma[dpos[0]]); dpos[0] += 1
            c += E.wait_for(ops)
            x = op("s_barrier", 'bar'); E.raw(x); bars[b] = x
            return c + 4
        return f
    for b in range(1, len(bpos)): post[bpos[b]].append(mkbar(b))

    e = E.emit
    e(salu(f"s_cmp_ge_u32 s2, 256", rd=[S(2)]))
    e(salu("s_cbranch_scc1 Lend"))
    E.raw(op("s_load_dwordx8 s[4:11], s[0:1], 0", 'smem'))
    if stamp: E.raw(op(f"s_load_dwordx2 s[78:79], s[0:1], {32 if 'dbgbuf' in stamp else 40}", 'smem'))
    if stamp: E.raw(op(f"{'s_memtime' if 'cyc' in stamp else 's_memrealtime'} s[100:101]", 'smem'))
    if any(isinstance(x, (int, tuple)) for x in dbg): E.raw(op("s_memrealtime s[100:101]", 'smem'))
    lane, tA, tB, tC, l15, lr_, lc = [V(40 + i) for i in range(7)]
    e(valu("v_lshrrev_b32", tA, "6", V(0)))
    e(valu("v_and_b32", lane, "63", V(0)))
    e(op(f"v_readfirstlane_b32 {rname(sW)}, {rname(tA)}", 'rfl', rd=[tA], wr=[sW]))
    e(valu("v_lshlrev_b32", vLin, "4", lane))
    def code_prefetch():
        E.raw(op("s_getpc_b64 s[28:29]", 'salu'))
        E.label("Lpc")
        e(salu("s_mov_b32 s30, Lcode_end-Lpc")); e(salu("s_mov_b32 s31, 0x20000"))
        e(salu("s_bfe_u32 s77, s2, 0x20003")); e(salu("s_lshl_b32 s77, s77, 2")); e(salu(f"s_add_u32 s77, s77, {rname(sW)}", rd=[sW]))
        if pf2 is not None:
            e(salu("s_lshl_b32 s38, s77, 10")); e(salu("s_add_u32 s38, s38, Lpost-Lpc", wr=[S(38)]))
        e(salu(f"s_mul_i32 s77, s77, {1024 * pfn}", wr=[S(77)]))
        if pfs:
            e(salu(f"s_min_u32 s77, s77, Lcode_end-Lpc-{1024 * pfn}"))
            e(salu("s_add_u32 s28, s28, s77")); e(salu("s_addc_u32 s29, s29, 0"))
            e(salu("s_and_b32 s28, s28, 0xffffffc0"))
            for k in range(16 * pfn): E.raw(op(f"s_load_dwordx16 s[80:95], s[28:29], {64 * k}", 'smem'))
            return
        for k in range(pfn): e(bload(DUM, vLin, sC, S(77), 1024 * k, pf_flags)); E.vm[-1].wr = set()
    if pfcode and pffirst: code_prefetch()
    e(salu("s_and_b32 s74, s2, 7"))
    e(salu("s_lshr_b32 s75, s2, 3"))
    e(salu("s_lshl_b32 s74, s74, 3"))
    e(salu("s_lshr_b32 s76, s75, 2"))
    e(salu("s_add_u32 s74, s74, s76"))
    e(salu("s_and_b32 s75, s75, 3"))
    e(salu("s_lshl_b32 s76, s74, 2"))
    e(salu("s_add_u32 s76, s76, s75"))
    e(salu("s_mul_i32 s76, s76, 98304"))
    if rot > 0: e(salu(f"s_mul_i32 s38, s74, {rot*8192}"))
    if rot < 0: e(salu(f"s_mul_i32 s38, s75, {-rot*8192}"))
    e(salu("s_lshl_b32 s74, s74, 17"))
    e(valu("v_lshrrev_b32", tB, "4", lane))
    e(valu("v_lshl_add_u32", tC, tA, "3", tB))
    e(valu("v_and_b32", l15, "15", lane))
    e(valu("v_xor_b32", vK1, l15, tC))
    e(valu("v_and_b32", vK1, "15", vK1))
    e(valu("v_lshlrev_b32", tC, "8", tC))
    e(valu("v_lshl_add_u32", vK0, vK1, "4", tC))
    e(valu("v_xor_b32", vK1, "64", vK0))
    e(salu(f"s_lshl_b32 {rname(sMK)}, {rname(sW)}, 11", rd=[sW], wr=[sMK]))
    if KBASE: e(salu(f"s_add_u32 {rname(sMK)}, {rname(sMK)}, {KBASE}", wr=[sMK]))
    e(salu(f"s_lshl_b32 {rname(sQo[0])}, {rname(sW)}, 12", rd=[sW], wr=[sQo[0]]))
    for t in early + pro_f:
        if t: e(salu(f"s_add_u32 {rname(sQo[t])}, {rname(sQo[0])}, {t*16384}", wr=[sQo[t]]))
    def stg_setup():
        e(salu(f"s_mul_i32 {rname(sStg)}, {rname(sW)}, {STGW}", rd=[sW], wr=[sStg]))
        e(salu(f"s_add_u32 {rname(sStg)}, {rname(sStg)}, {STG}", wr=[sStg]))
        if 'f' in mode:
            e(valu("v_xor_b32", vQd[0], tB, l15))
            e(valu("v_lshlrev_b32", vQd[0], "4", vQd[0]))
            e(valu("v_lshl_add_u32", vQd[0], tB, "8", vQd[0]))
            for i in range(1, 4): e(valu("v_xor_b32", vQd[i], str(64 * i), vQd[0]))
    if pro_f: stg_setup()
    def tileoff(k):
        if not rot: e(salu(f"s_mov_b32 {rname(sT[k])}, {k*8192}", wr=[sT[k]]))
        else:
            e(salu(f"s_add_u32 {rname(sT[k])}, s38, {k*8192}", wr=[sT[k]]))
            e(salu(f"s_and_b32 {rname(sT[k])}, {rname(sT[k])}, 0x1ffff", wr=[sT[k]]))
    for k in range(0, pre_kv + 1): tileoff(k)
    e(salu(f"s_mov_b32 s18, 131072")); e(salu(f"s_mov_b32 s19, 0x20000"))
    e(salu(f"s_mov_b32 s14, 98304")); e(salu(f"s_mov_b32 s15, 0x20000"))
    E.raw(op("s_waitcnt lgkmcnt(0)", 'wait'))
    do_stamp('karg')
    e(salu("s_add_u32 s16, s6, s74")); e(salu("s_addc_u32 s17, s7, 0"))
    e(salu("s_add_u32 s12, s4, s76")); e(salu("s_addc_u32 s13, s5, 0"))
    pro_k = [x for kind, x in need_at[0] if kind == 'K']
    for s in sorted(pro_k):
        for o_ in kdma(s): e(o_)
    for t in sorted(early + pro_f):
        for o_ in (Qd[t] if t in pro_f else sum(qld(t), [])): e(o_)
    do_stamp('qiss')
    e(salu("s_add_u32 s20, s8, s74")); e(salu("s_addc_u32 s21, s9, 0"))
    e(salu(f"s_mov_b32 s22, 131072")); e(salu(f"s_mov_b32 s23, 0x20000"))
    e(salu(f"s_add_u32 {rname(sMV)}, {rname(sMK)}, {VBASE - KBASE}", wr=[sMV]))
    e(valu("v_lshlrev_b32", vV0, "1", tB))
    e(valu("v_xor_b32", vV0, vV0, l15))
    e(valu("v_lshl_add_u32", vV0, vV0, "4", tC))
    e(valu("v_xor_b32", vV1, "128", vV0))
    for s in range(0, pre_kv + 1):
        if s not in pro_k:
            for o_ in kdma(s): e(o_)
        if s < pre_kv:
            for o_ in vdma(s): e(o_)
    if pfcode and not pffirst: code_prefetch()
    e(salu("s_add_u32 s24, s10, s76")); e(salu("s_addc_u32 s25, s11, 0"))
    e(salu(f"s_mov_b32 s26, 98304")); e(salu(f"s_mov_b32 s27, 0x20000"))
    if tlb:
        e(valu("v_lshlrev_b32", lr_, "12", lane))
        for srd in [sV, sK, sQ] + ([sO] if tlb == 'all' else []):
            e(op(f"buffer_load_dword {rname(DUM + 4)}, {rname(lr_)}, {rname(srd,4)}, 0 offen offset:2048", 'vm_ld', rd=[lr_] + rng(srd, 4)))
    c = math.log2(math.e) / math.sqrt(128.0)
    e(salu(f"s_mov_b32 {rname(sScale)}, {f32bits(c):#x}", wr=[sScale]))
    e(salu(f"s_mov_b32 {rname(sMask)}, 0xffff0000", wr=[sMask]))
    e(salu(f"s_mov_b32 {rname(sNScale)}, {f32bits(-c):#x}", wr=[sNScale]))
    e(salu(f"s_mov_b32 {rname(sThr)}, {f32bits(2.0 ** thr_log2):#x}", wr=[sThr]))
    for k in range(pre_kv + 1, 16): tileoff(k)
    for t in late:
        if t not in pro_f: e(salu(f"s_add_u32 {rname(sQo[t])}, {rname(sQo[0])}, {t*16384}", wr=[sQo[t]]))
    if not pro_f: stg_setup()
    e(salu(f"s_mov_b32 s77, 272", wr=[S(77)]))
    e(valu("v_bfe_u32", lr_, lane, "2", "2"))
    e(valu("v_and_b32", lc, "3", lane))
    e(valu("v_mul_u32_u24", vRow, S(77), tB))
    e(valu("v_lshl_add_u32", vRow, l15, "4", vRow))
    e(valu("v_add_u32", vRow, sStg, vRow))
    e(valu("v_mul_u32_u24", vFo, S(77), l15))
    e(valu("v_add_u32", vFo, sStg, vFo))
    e(valu("v_lshl_add_u32", vFq, tB, "4", vFo))
    e(valu("v_lshl_add_u32", vFo, tB, "3", vFo))
    if o264:
        e(valu("v_lshlrev_b32", tC, "3", l15))
        e(valu("v_sub_u32", vFo, vFo, tC))
    e(valu("v_xor_b32", KR[0], tB, l15))
    e(valu("v_lshlrev_b32", KR[0], "4", KR[0]))
    e(valu("v_lshl_add_u32", KR[0], l15, "8", KR[0]))
    for ks in range(1, 4): e(valu("v_xor_b32", KR[ks], str(ks * 64), KR[0]))
    if 'f' in mode:
        for ks in range(4): e(valu("v_add_u32", vQr[ks], sStg, KR[ks]))
    if KBASE:
        for ks in range(4): e(valu("v_add_u32", KR[ks], str(KBASE), KR[ks]))
    e(valu("v_lshl_add_u32", tC, tB, "2", lr_))
    e(valu("v_lshlrev_b32", VR[0], "8", tC))
    e(valu("v_and_b32", tC, "7", tC))
    e(valu("v_lshl_add_u32", VR[0], tC, "5", VR[0]))
    e(valu("v_lshl_add_u32", VR[0], lc, "3", VR[0]))
    e(valu("v_add_u32", VR[0], str(VBASE), VR[0]))
    for dt in range(1, 8): e(valu("v_xor_b32", VR[dt], str(dt * 32), VR[0]))
    e(op(f"v_cmp_eq_u32 vcc, 0, {rname(lc)}", 'valu', rd=[lc], wr=[VCC]))
    e(valu("v_mov_b32", tC, "0x3f803f80"))
    e(op(f"v_cndmask_b32 {rname(tC)}, 0, {rname(tC)}, vcc", 'valu', rd=[tC, VCC], wr=[tC]))
    for r in range(4): e(valu("v_accvgpr_write_b32", ONES + r, tC))
    do_stamp('pro')
    if pfs: E.raw(op("s_waitcnt lgkmcnt(0)", 'wait'))
    def kfirst():
        E.wait_for(sum([Kd[s] for s in pro_k], []))
        x = op("s_barrier", 'bar'); E.raw(x); bars[0] = x
        Kreads[0] = [kread(0, f) for f in korder]
        for f in range(8): e(Kreads[0][f])
    if earlybar: kfirst()
    dpos = [0]
    for k, t in enumerate(early):
        for n_, o_ in enumerate(prescale_ops(t, k % 2, pk)):
            e(o_)
            if n_ % ((17 if q128 else 18) if pk else 22) == 0:
                nn = 0
                while nn < pro_dma and dpos[0] < len(dma) and 'after_bar' not in dma[dpos[0]].meta and all(a.done for a in dma[dpos[0]].meta.get('after', ())) and len(E.vm) < maxout:
                    x = dma[dpos[0]]; e(x); dpos[0] += 1; nn += x.kind != 'salu'
        rd = qfrag_reads(t, k % 2)
        if k < len(early) - 1 or True:
            for o_ in rd: e(o_)
    while not early and dpos[0] < len(dma) and 'after_bar' not in dma[dpos[0]].meta and all(a.done for a in dma[dpos[0]].meta.get('after', ())) and len(E.vm) < maxout:
        e(dma[dpos[0]]); dpos[0] += 1
    do_stamp('presc')
    if not earlybar: kfirst()

    heads = [0] * len(streams)
    tmp_owner = [None]
    TT = {T0, T1, T2, T3}
    def avail(o_, g):
        if o_.earliest > g: return False
        for a in o_.meta.get('after', ()):
            if not a.done: return False
        ab = o_.meta.get('after_bar')
        if ab is not None and ab not in bars: return False
        return True
    def tmp_ok(k, o_):
        return (not ((o_.rd | o_.wr) & TT)) or tmp_owner[0] in (None, k)
    def after_emit(k, o_):
        if not ((o_.rd | o_.wr) & TT): return
        tmp_owner[0] = k if (o_.wr & TT) else None
    MEMK = ('ds_r', 'ds_w', 'vm_ld', 'vm_dma', 'vm_st')
    live = list(range(len(streams)))
    def key(k):
        o_ = streams[k][heads[k]]; return (o_.deadline, getattr(o_, 'due', 0))
    def pick(g, mem, room=1000, only8=False):
        best = None
        for k in live:
            if heads[k] >= len(streams[k]): continue
            o_ = streams[k][heads[k]]
            if (o_.kind in MEMK) != mem or o_.cost > room or (only8 and o_.cost < 8): continue
            if not avail(o_, g) or not tmp_ok(k, o_) or not E.ready(o_): continue
            gm = o_.meta.get('gapmin')
            if gm and g < 10 ** 6 and g - lastg.get(gm[0], -100) < gm[1]: continue
            if best is None or key(k) < key(best): best = k
        return best
    lastg = {}; curg = [0]
    def take(k):
        o_ = streams[k][heads[k]]; heads[k] += 1
        if o_.meta.get('gapmin'): lastg[o_.meta['gapmin'][0]] = curg[0]
        if o_.kind == 'qwait':
            o_.done = True; return E.wait_for(o_.qops)
        c = E.emit(o_); after_emit(k, o_); return c
    def force(g):
        c = 0
        while True:
            cand = [k for k in live if heads[k] < len(streams[k]) and streams[k][heads[k]].deadline <= g]
            if not cand: return c
            ok = [k for k in cand if avail(streams[k][heads[k]], g) and tmp_ok(k, streams[k][heads[k]])]
            if not ok:
                ko = tmp_owner[0]
                if ko is None:
                    assert avail(dma[dpos[0]], g), dma[dpos[0]]
                    c += E.emit(dma[dpos[0]]); dpos[0] += 1; continue
                ok = [ko]
            rdy = [k for k in ok if E.ready(streams[k][heads[k]])]
            if not rdy and fillnop:
                k = pick(g - 1, False, 4)
                if k is not None: c += take(k); continue
            c += take(min(rdy or ok, key=key))
    gapcost = []
    stamp_gaps = {qk0[first_of_step[x]] for x in (stamp or ()) if isinstance(x, int)}
    carry = 0
    lastdma = [-100]; stepidx = {}
    for g in range(NM):
        curg[0] = g
        for s_ in range(NS):
            if g == qk0[first_of_step[s_]] + loopoff: stepidx[s_] = len(E.out)
        carry += force(g)
        while fillnop and E.need(M[g]) > 0:
            k = pick(g - 1, False, 4)
            if k is None or (streams[k][heads[k]].wr & M[g].rd): break
            carry += take(k)
        carry += E.emit(M[g]) - 8
        if g: gapcost.append(carry)
        if g == 0: do_stamp('m0')
        used = 0
        for o_ in pinned[g]: used += E.emit(o_)
        idle = pick(g, False) is None
        while dpos[0] < len(dma) and used + 4 <= budget and len(E.vm) < maxout and g - lastdma[0] >= (dgap if g > 60 else 1):
            o_ = dma[dpos[0]]
            if o_.kind == 'salu': break
            used += E.emit(o_); dpos[0] += 1; lastdma[0] = g
        while used < budget:
            k = pick(g, True, 16 if used == 0 else budget - used)
            if k is None: break
            used += take(k)
        for f in post[g]: used += f()
        if g in stamp_gaps: stamp.add('gap'); do_stamp('gap')
        for s_ in range(NS):
            if g == qk0[first_of_step[s_]]: do_spin(s_)
        if dpos[0] < len(dma) and dma[dpos[0]].kind == 'salu' and avail(dma[dpos[0]], g) and used + 4 <= budget:
            used += E.emit(dma[dpos[0]]); dpos[0] += 1
        while True:
            room = budget - used
            k = pick(g, False, room)
            if k is None: break
            o_ = streams[k][heads[k]]
            if room >= 8 and o_.cost < 8:
                k2 = pick(g, False, room, only8=True)
                if k2 is not None:
                    D = o_.deadline
                    if streams[k2][heads[k2]].deadline <= D: k = k2 if D - g > urg else k
                    elif D >= 100000: k = k2
                    else:
                        work = sum(x.cost for kk in live for x in streams[kk][heads[kk]:] if x.deadline <= D)
                        cap = sum(budget - sum(x.cost for x in pinned[gg]) - 4 * len(post[gg]) for gg in range(g + 1, min(D, NM)))
                        if cap - work >= safety: k = k2
            used += take(k)
        carry = used
        if g % 64 == 0: live = [k for k in live if heads[k] < len(streams[k])]
    assert dpos[0] == len(dma), (dpos[0], len(dma))
    do_stamp('mend')
    lastst = -100
    if tailopt: E.ldslat = 110
    while any(heads[k] < len(streams[k]) for k in live):
        k = pick(10 ** 6, True)
        if tailopt and k is not None and streams[k][heads[k]].kind == 'vm_st' and len(E.out) - lastst < tailopt:
            alt = [kk for kk in live if kk != k and heads[kk] < len(streams[kk]) and streams[kk][heads[kk]].kind != 'vm_st' and avail(streams[kk][heads[kk]], 10 ** 6)]
            if alt: k = min(alt, key=key)
        if k is None: k = pick(10 ** 6, False)
        if k is None:
            k = min([k for k in live if heads[k] < len(streams[k]) and avail(streams[k][heads[k]], 10 ** 6)], key=key)
        if streams[k][heads[k]].kind == 'vm_st': lastst = len(E.out)
        take(k)
    do_stamp('epi')
    est = sum(max(16, 8 + c) for c in gapcost)
    if 'prof' in dbg:
        for s in range(NS):
            a = qk0[first_of_step[s]]; b = qk0[first_of_step[s + 1]] if s + 1 < NS else NM - 1
            sys.stderr.write(f"  step {s}: gaps {b-a} over {sum(max(0, c - 8) for c in gapcost[a:b])} idle {sum(max(0, 8 - c) for c in gapcost[a:b])}\n")
    ntail = len(E.out) - max(k for k, i_ in enumerate(E.out) if i_.kind == 'mfma')
    sys.stderr.write(f"tail instrs {ntail} ")
    sys.stderr.write(f"steps {NS} gaps over budget: {sum(1 for c in gapcost if c > 8)}  est main cycles {est}  nops {E.nnop} instrs {len(E.out)} bars {len(bpos)}\n")

    if 'padnop' in dbg or 'padmfma' in dbg:
        e(salu("s_mov_b32 s74, 100"))
        E.nop(16)
        E.label("Lpad")
        if 'padnop' in dbg:
            for k in range(6): E.raw(op("s_nop 7", 'nop'))
        else:
            for k in range(12): E.raw(mfma16(SB[0] + 4 * (k % 4), KF + 4 * (k % 8), QF[k % 6] + 4 * (k % 4), SB[0] + 4 * (k % 4)))
        e(salu("s_sub_u32 s74, s74, 1")); e(salu("s_cmp_lg_u32 s74, 0")); e(salu("s_cbranch_scc1 Lpad"))
        E.nop(16)
    spin = [x for x in dbg if isinstance(x, int)]
    if spin:
        E.raw(op("s_waitcnt vmcnt(0) lgkmcnt(0)", 'wait'))
        E.label("Lspin")
        E.raw(op("s_memrealtime s[98:99]", 'smem')); E.raw(op("s_waitcnt lgkmcnt(0)", 'wait'))
        e(salu("s_sub_u32 s74, s98, s100")); e(salu(f"s_cmp_lt_u32 s74, {spin[0]}")); e(salu("s_cbranch_scc1 Lspin"))
    e(salu(f"s_or_b64 s[74:75], {rname(sFl[0],2)}, {rname(sFl[1],2)}", rd=rng(sFl[0], 4)))
    for t in range(2, NT): e(salu(f"s_or_b64 s[74:75], s[74:75], {rname(sFl[t],2)}", rd=rng(sFl[t], 2)))
    if slow: e(salu("s_cbranch_scc1 Lslow"))
    if stamp:
        E.raw(op("s_waitcnt vmcnt(0)", 'wait')); E.vm = []
        do_stamp('drain')
        e(salu(f"s_lshl_b32 s74, s2, 2")); e(salu(f"s_add_u32 s74, s74, {rname(sW)}")); e(salu("s_lshl_b32 s74, s74, 6", wr=[S(74)]))
        e(valu("v_mov_b32", V(40), S(74)))
        for k in range(nstamp[0] + 1):
            e(valu("v_mov_b32", V(42 + k), S(100) if k == 0 else S(80 + 2 * (k - 1))))
        e(salu("s_mov_b32 s68, s78")); e(salu("s_mov_b32 s69, s79")); e(salu("s_mov_b32 s70, 0x100000")); e(salu("s_mov_b32 s71, 0x20000"))
        for k in range(nstamp[0] + 1):
            E.raw(op(f"buffer_store_dword v{42+k}, v40, s[68:71], 0 offen offset:{4*k}", 'vm_st', rd=[V(40), V(42 + k)]))
    if stamp and 'dbgbuf' in stamp:
        while E.out[-1].text.startswith('buffer_store_dword v'): E.out.pop(); E.pos.pop()
        e(salu("s_mov_b32 s70, 256"))
        e(valu("v_mov_b32", V(40), "0"))
        n = nstamp[0]
        e(valu("v_not_b32", V(60), V(42)))
        for k in range(1, n + 1): e(valu("v_sub_u32", V(60 + k), V(42 + k), V(42)))
        e(salu("s_mov_b64 exec, 1")); E.nop(4)
        E.raw(op(f"buffer_atomic_umax v{42+n}, v40, s[68:71], 0 offen", 'vm_st'))
        E.raw(op(f"buffer_atomic_umax v60, v40, s[68:71], 0 offen offset:4", 'vm_st'))
        for k in range(1, n + 1): E.raw(op(f"buffer_atomic_umax v{60+k}, v40, s[68:71], 0 offen offset:{4+4*k}", 'vm_st'))
    E.label("Lend")
    E.raw(op("s_endpgm", 'end'))

    if slow:
        def fence():
            E.raw(op("s_waitcnt vmcnt(0) lgkmcnt(0)", 'wait')); E.vm = []; E.lgkm = []
            E.nop(16)
        E.label("Lslow")
        fence()
        sTl, sSo, sJ, sJ2, sJ3 = S(74), S(75), S(76), S(77), S(38)
        vKg, vS0, vS1, t_ = V(92), V(93), V(94), V(95)
        e(valu("v_lshrrev_b32", t_, "4", vLin))
        e(valu("v_and_b32", vKg, "15", t_)); e(valu("v_lshlrev_b32", vKg, "8", vKg))
        e(valu("v_lshrrev_b32", t_, "4", t_)); e(valu("v_lshl_add_u32", vKg, t_, "4", vKg))
        e(salu(f"s_lshl_b32 s77, {rname(sW)}, 11", wr=[S(77)]))
        e(valu("v_subrev_u32", vS0, S(77), vV0)); e(valu("v_subrev_u32", vS1, S(77), vV1))
        e(salu(f"s_sub_u32 s77, {rname(sStg)}, {VBASE}", wr=[S(77)]))
        for dt in range(8): e(valu("v_add_u32", VR[dt], S(77), VR[dt]))
        if o264:
            for o_ in row2_setup(KR, 2): e(o_)
        e(salu(f"s_mov_b32 {rname(sTl)}, 0", wr=[sTl]))
        e(salu(f"s_mov_b32 {rname(sSo)}, {rname(sQo[0])}", wr=[sSo]))
        E.label("Lslow_tile")
        e(salu(f"s_cmp_eq_u64 {rname(sFl[0],2)}, 0"))
        e(salu("s_cbranch_scc1 Lslow_next"))
        for i in range(4): e(bload(LAND[1] + 4 * i, vLin, sQ, sSo, i * 1024))
        for o_ in prescale_ops(1, 0): e(o_)
        for o_ in qfrag_reads(0, 0): e(o_)
        e(valu("v_mov_b32", T2, "0xff800000"))
        e(salu(f"s_mov_b32 {rname(sJ)}, 0", wr=[sJ]))
        fence()
        sb = SB[0]
        def kloads():
            e(salu(f"s_add_u32 {rname(sJ2)}, {rname(sJ)}, 4096", wr=[sJ2]))
            for f in range(8): e(bload(KF + 4 * f, vKg, sK, (sJ, sJ2)[f // 4], (f % 4) * 64))
        def qk(c0):
            for kt in range(2):
                for ks in range(4): e(mfma16(sb + 4 * kt, KF + 4 * (4 * kt + ks), QF[0] + 4 * ks, sb + 4 * kt if ks else c0))
        E.label("Lslow_p1")
        kloads(); qk(None)
        for r in range(0, 8, 2): e(valu("v_max3_f32", T2, T2, sb + r, sb + r + 1))
        e(salu(f"s_add_u32 {rname(sJ)}, {rname(sJ)}, 8192", wr=[sJ]))
        fence()
        e(salu(f"s_cmp_lt_u32 {rname(sJ)}, 131072")); e(salu("s_cbranch_scc1 Lslow_p1"))
        for o_ in rowmax_finish(T2, T1): e(o_)
        e(valu("v_sub_f32", T2, "0", T2))
        for r in range(4): e(valu("v_mov_b32", NEG[0] + r, T2))
        for r in range(32): e(valu("v_mov_b32", O[2] + r, "0"))
        for r in range(4): e(valu("v_accvgpr_write_b32", LACC[0] + r, "0"))
        e(salu(f"s_mov_b32 {rname(sJ)}, 0", wr=[sJ]))
        fence()
        E.label("Lslow_p2")
        kloads()
        for hh in range(4):
            e(salu(f"s_add_u32 m0, {rname(sStg)}, {hh*2048}", wr=[M0]))
            e(salu(f"s_add_u32 {rname(sJ3)}, {rname(sJ)}, {hh*2048}", wr=[sJ3]))
            e(bdma(vS0, sV, sJ3, 0)); e(bdma(vS1, sV, sJ3, 1024))
        fence()
        for dt in range(8):
            for j in range(2): e(ds_readtr(VF + 4 * dt + 2 * j, VR[dt], j * 4096))
        qk(NEG[0])
        for r in range(8): e(valu("v_exp_f32", sb + r, sb + r, kind='trans'))
        for j in range(4): e(valu("v_cvt_pk_bf16_f32", sb + j, sb + 2 * j, sb + 2 * j + 1))
        e(mfma16(LACC[0], ONES, sb, LACC[0]))
        for dt in range(8): e(mfma16(O[2] + 4 * dt, VF + 4 * dt, sb, O[2] + 4 * dt))
        e(salu(f"s_add_u32 {rname(sJ)}, {rname(sJ)}, 8192", wr=[sJ]))
        fence()
        e(salu(f"s_cmp_lt_u32 {rname(sJ)}, 131072")); e(salu("s_cbranch_scc1 Lslow_p2"))
        for o_ in epilogue_head(0, T0, RC[0])[0]: e(o_)
        for o_ in epilogue_body(O[2], RC[0], sSo, 0, slow_=True)[0]: e(o_)
        fence()
        E.label("Lslow_next")
        for t in range(NT - 1): e(salu(f"s_mov_b64 {rname(sFl[t],2)}, {rname(sFl[t+1],2)}"))
        e(salu(f"s_add_u32 {rname(sSo)}, {rname(sSo)}, 16384", wr=[sSo]))
        e(salu(f"s_add_u32 {rname(sTl)}, {rname(sTl)}, 1", wr=[sTl]))
        e(salu(f"s_cmp_lt_u32 {rname(sTl)}, {NT}")); e(salu("s_cbranch_scc1 Lslow_tile"))
        E.raw(op("s_endpgm", 'end'))

    if loop:
        import re as _re
        s0, s1, P = loop
        blocks = [E.out[stepidx[s_]:stepidx[s_ + P]] for s_ in range(s0, s1, P)]
        tre = _re.compile(r"\], s(4\d|5[0-5]) offen")
        norm = lambda b: [tre.sub("], sT offen", i.text) for i in b]
        regs = lambda b: [int(m.group(1)) for i in b for m in [tre.search(i.text)] if m]
        for k_, b in enumerate(blocks[1:], 1):
            assert norm(b) == norm(blocks[0]), ("loop blocks differ", k_, [(x, y) for x, y in zip(norm(b), norm(blocks[0])) if x != y][:3], len(b), len(blocks[0]))
            assert regs(b) == [r + P * k_ for r in regs(blocks[0])], (regs(b), regs(blocks[0]))
        body = list(blocks[0])
        rs = sorted(set(regs(body)))
        later = {int(m.group(1)) for i in E.out[stepidx[s1]:] for m in [tre.search(i.text)] if m}
        assert not (set(rs) & later), (rs, later)
        for r in rs:
            last = max(k_ for k_, i in enumerate(body) if _re.search(rf"\], s{r} offen", i.text))
            k_ = last + 1; placed_ = False
            while k_ < len(body):
                while k_ < len(body) and body[k_].kind != 'mfma': k_ += 1
                e_ = k_ + 1
                while e_ < len(body) and body[e_].kind != 'mfma': e_ += 1
                if e_ < len(body) and sum(i.cost for i in body[k_ + 1:e_]) <= 4:
                    body.insert(e_, salu(f"s_add_u32 s{r}, s{r}, {P * 8192}")); placed_ = True; break
                k_ = e_
            if not placed_: body.append(salu(f"s_add_u32 s{r}, s{r}, {P * 8192}"))
        lab = Ins("Lsteady:", 'label', cost=0)
        fin = (rs[0] - 40 + P * len(blocks)) * 8192
        if lalign: lab = Ins(f".p2align {lalign}\nLsteady:", 'label', cost=0)
        body = [lab] + body + [salu(f"s_cmp_lg_u32 s{rs[0]}, {fin}"), salu("s_cbranch_scc1 Lsteady"), Ins("Lpost:", 'label', cost=0)]
        E.out = E.out[:stepidx[s0]] + body + E.out[stepidx[s1]:]
        sys.stderr.write(f"loop: {len(blocks)} x {len(body)} instrs, tail gap {[i.text[:20] for i in body[-5:]]}\n")
    def drop(i):
        if 'nobar' in dbg and i.kind == 'bar': return True
        if 'nodma' in dbg and i.kind == 'vm_dma': return True
        if 'novmw' in dbg and i.kind == 'wait' and 'vmcnt' in i.text and 'lgkm' not in i.text: return True
        if 'nods' in dbg and i.kind == 'ds_r': return True
        if 'nost' in dbg and i.kind == 'vm_st' and 'dwordx4' in i.text: return True
        if 'nodsw' in dbg and i.kind == 'ds_w': return True
        return False
    E.out = [i for i in E.out if not drop(i)]
    hdr = open("cdna_kernels/" + NAME + ".s.ref").read().split("\n")
    top = [l for l in hdr if l.startswith(";") and "@launch" not in l and not l.startswith("; Override") and not l.startswith("; grid=")]
    txt = "\n".join(top) + f"\n; @launch grid=(256,1,1) block=(256,1,1) lds={LDS}\n" + DOC
    txt += f""".amdgcn_target "amdgcn-amd-amdhsa--gfx950"
.text
.globl {NAME}_kernel
.p2align 8
.type {NAME}_kernel,@function
{NAME}_kernel:
""" + E.text() + f"""Lcode_end:
.section .rodata,"a"
.p2align 6
.amdhsa_kernel {NAME}_kernel
  .amdhsa_next_free_vgpr 512
  .amdhsa_next_free_sgpr 102
  .amdhsa_accum_offset 256
  .amdhsa_group_segment_fixed_size 0
  .amdhsa_kernarg_size 48
  .amdhsa_user_sgpr_count 2
  .amdhsa_user_sgpr_kernarg_segment_ptr 1
  .amdhsa_system_sgpr_workgroup_id_x 1
.end_amdhsa_kernel
"""
    return txt, LDS

from gen import META
def write(name, **kw):
    import subprocess
    txt, lds = build(**kw)
    open(name + ".s", "w").write(txt)
    open(name + ".full.s", "w").write(txt + META.format(n=NAME + "_kernel"))
    r = subprocess.run(["clang", "-x", "assembler", "-target", "amdgcn-amd-amdhsa", "-mcpu=gfx950", name + ".full.s", "-o", name + ".co"], capture_output=True, text=True)
    if r.returncode: print(r.stderr[:3000]); sys.exit(1)
    return lds

if __name__ == "__main__":
    print("lds", write("k2"))
```
